```python
import torch

def _softmax(x, axis=-1):
    return torch.softmax(x, dim=axis)
def _gelu(x):
    return torch.nn.functional.gelu(x, approximate="tanh")
def _silu(x):
    return torch.nn.functional.silu(x)
def _sigmoid(x):
    return torch.sigmoid(x)
def _layernorm(x, axis=-1, eps=1e-5):
    m = x.mean(dim=axis, keepdim=True)
    v = x.var(dim=axis, keepdim=True, unbiased=False)
    return (x - m) / torch.sqrt(v + eps)
def _scatter_add(tgt, idx, src, axis=0):
    return tgt.clone().index_add_(axis, idx, src)
def _segment_sum(src, seg, n):
    out = torch.zeros((n,) + src.shape[1:], dtype=src.dtype)
    return out.index_add_(0, seg, src)
def _pad(x, pw):
    flat = tuple(v for pair in reversed(pw) for v in pair)
    return torch.nn.functional.pad(x, flat)

kernel_name = 'sequential_preLN__ssm_conv_h3__glu_gated_swiglu__prompt'

def setup_inputs():

    _w = (lambda a: (lambda t: t.to(torch.bfloat16) if t.is_floating_point() else t)(torch.as_tensor(a)))
    def _A_setup():
        B, S, D = 1, 2048, 512
        ks = 4
        return {
            "q": _w((lambda *s: torch.randn(*s, dtype=torch.bfloat16) * 0.05)(B, S, D)),
            "k": _w((lambda *s: torch.randn(*s, dtype=torch.bfloat16) * 0.2)(B, S, D)),
            "v": _w((lambda *s: torch.randn(*s, dtype=torch.bfloat16) * 0.2)(B, S, D)),
            "shift_k": _w((lambda *s: torch.randn(*s, dtype=torch.bfloat16) * 0.2)(D, ks) * 0.5),
            "ssm_k": _w((lambda *s: torch.randn(*s, dtype=torch.bfloat16) * 0.4)(D, S) * (1.0 / S ** 0.5)),
            "ssm_D": _w((lambda *s: torch.randn(*s, dtype=torch.bfloat16) * 0.2)(D)),
        }
    _A_in = _A_setup()

    def _B_setup():
        B, S, D, F = 1, 2048, 512, 1792
        return {
            "x": _w((lambda *s: torch.randn(*s, dtype=torch.bfloat16) * 0.05)(B, S, D)),
            "w1": _w((lambda *s: torch.randn(*s, dtype=torch.bfloat16) * 0.2)(D, F) * (2.0 / D) ** 0.5),
            "w3": _w((lambda *s: torch.randn(*s, dtype=torch.bfloat16) * 0.2)(D, F) * (2.0 / D) ** 0.5),
            "w2": _w((lambda *s: torch.randn(*s, dtype=torch.bfloat16) * 0.2)(F, D) * (2.0 / F) ** 0.5),
        }
    _B_in = _B_setup()

    return {
        "A_q": _A_in["q"],
        "A_k": _A_in["k"],
        "A_v": _A_in["v"],
        "A_shift_k": _A_in["shift_k"],
        "A_ssm_k": _A_in["ssm_k"],
        "A_ssm_D": _A_in["ssm_D"],
        "B_x": _B_in["x"],
        "B_w1": _B_in["w1"],
        "B_w3": _B_in["w3"],
        "B_w2": _B_in["w2"],
    }

def reference(A_q, A_k, A_v, A_shift_k, A_ssm_k, A_ssm_D, B_x, B_w1, B_w3, B_w2):
    def _A_ref(q, k, v, shift_k, ssm_k, ssm_D):
        B, S, D = q.shape
        ks = shift_k.shape[-1]
        k_pad = _pad(k, ((0, 0), (ks - 1, 0), (0, 0)))
        k_shift = torch.zeros_like(k)
        for t in range(ks):
            k_shift = k_shift + k_pad[:, t:t + S, :] * shift_k[:, ks - 1 - t][None, None, :]
        kv = k_shift * v
        L = 2 * S
        kv_pad = _pad(kv, ((0, 0), (0, S), (0, 0)))
        kf_pad = _pad(ssm_k, ((0, 0), (0, S)))
        kv_f = (lambda x, axes=(-2,-1): torch.fft.rfft2(x.float(), dim=axes))(kv_pad[:, None, :, :], axes=(1, 2))
        kf_f = (lambda x, axes=(-2,-1): torch.fft.rfft2(x.float(), dim=axes))(kf_pad[:, None, :], axes=(1, 2))
        kf_f = (lambda x, *d: x.permute(*d))(kf_f, 1, 2, 0)
        y_f = kv_f * kf_f[None, :, :, :]
        y = (lambda x, s, axes=(-2,-1): torch.fft.irfft2(x, s=s, dim=axes).to(torch.bfloat16))(y_f, (1, L), axes=(1, 2))[:, 0, :S, :]
        y = y + kv * ssm_D[None, None, :]
        return q * y

    def _B_ref(x, w1, w3, w2):
        gate = torch.einsum("bsd,df->bsf", x, w1)
        up = torch.einsum("bsd,df->bsf", x, w3)
        h = _silu(gate) * up
        out = torch.einsum("bsf,fd->bsd", h, w2)
        return out

    x = A_q
    h = x + _A_ref(_layernorm(x, axis=-1), A_k, A_v, A_shift_k, A_ssm_k, A_ssm_D)
    h2 = h + _B_ref(_layernorm(h, axis=-1), B_w1, B_w3, B_w2)
    return h2
```

```python
KNAME = "sequential_preLN__ssm_conv_h3__glu_gated_swiglu__prompt"

S, D, F = 2048, 512, 1792
RS = 4352
WS_KVR = 0x000000
WS_XT = 0x240000
WS_HT = 0x480000
WS_H = 0x6C0000
WS_ST1 = 0xDC0000
WS_CS = 0xDC4000
WS_FLAG = 0xDC8000
WS_SIZE = 0xE00000

LDS_BYTES = 163840

sX, sK, sV, sSH, sSK, sSD, sBX, sW1, sW3, sW2, sOUT, sDBG, sWS = range(16, 42, 2)
sWAVE = 3
SRD_WS = 44


class Asm:
    def __init__(self):
        self.lines = []
        self.nlabel = 0

    def __call__(self, text=""):
        for ln in text.split("\n"):
            ln = ln.strip()
            if ln:
                self.lines.append(ln if ln.endswith(":") else "  " + ln)

    def label(self, stem):
        self.nlabel += 1
        return f"L_{stem}_{self.nlabel}"

    def c(self, text):
        self.lines.append("  ; " + text)

    def srd(self, r, ptr, size, off_sgpr=None, off_imm=None):
        if off_sgpr is not None:
            self(f"s_add_u32 s{r}, s{ptr}, s{off_sgpr}")
            self(f"s_addc_u32 s{r+1}, s{ptr+1}, 0")
        elif off_imm:
            self(f"s_add_u32 s{r}, s{ptr}, {off_imm}")
            self(f"s_addc_u32 s{r+1}, s{ptr+1}, 0")
        else:
            self(f"s_mov_b32 s{r}, s{ptr}")
            self(f"s_mov_b32 s{r+1}, s{ptr+1}")
        self(f"s_mov_b32 s{r+2}, {size}")
        self(f"s_mov_b32 s{r+3}, 0x00020000")

    def text(self):
        return "\n".join(self.lines) + "\n"


def vr(a, n):
    return f"v[{a}:{a+n-1}]" if n > 1 else f"v{a}"


def sr(a, n):
    return f"s[{a}:{a+n-1}]" if n > 1 else f"s{a}"


def interleave(main, fill, start=0, end=None):
    end = len(main) if end is None else end
    n = end - start
    out = []
    for i, m in enumerate(main):
        out.append(m)
        if start <= i < end:
            j = i - start
            out += fill[(len(fill) * j) // n:(len(fill) * (j + 1)) // n]
    return out
```

```python
from common import *
from p0 import *

FA = 128
D4 = 96
ACC = 16
BS = (48, 80)
XR = 112
vAOFF, vSHIFT, vBADDR = 7, 8, 9
sCP, sCH, sHH, sDV, sHTO = 68, 69, 70, 71, 72


def fa(mu, rr):
    return FA + 4 * (8 * rr + mu)


def m_conv_issue(a):
    a.c("conv: A fragment loads straight from ssm_k")
    a(f"""
    s_lshr_b32 s{sCP}, s4, 1
    s_lshl_b32 s6, s2, 1
    s_add_u32 s{sCH}, s6, s{sCP}         ; channel
    s_lshl_b32 s7, s2, 2
    s_load_dword s{sDV}, s[{sSD}:{sSD+1}], s7
    s_lshl_b32 s6, s{sCH}, 12
    """)
    a.srd(48, sSK, 4096, off_sgpr=6)
    a(f"""
    s_and_b32 s{sHH}, s4, 1              ; h
    v_and_b32 v11, 15, v1                ; b / column
    v_lshrrev_b32 v12, 4, v1
    v_lshl_add_u32 v13, v12, 3, v11      ; b + 8 kg
    v_add_u32 v13, 1, v13                ; e + 16
    v_and_b32 v{vSHIFT}, 1, v13
    v_lshlrev_b32 v{vSHIFT}, 1, v{vSHIFT}
    v_and_b32 v13, -2, v13
    v_lshlrev_b32 v13, 1, v13
    s_lshl_b32 s6, s{sHH}, 8
    v_add_u32 v{vAOFF}, s6, v13
    """)
    for i in range(5):
        a(f"v_add_u32 v{24+i}, {4*i-32}, v{vAOFF}")
    for i in range(5):
        dst = fa(0, 0) + i if i < 4 else D4
        a(f"buffer_load_dword v{dst}, v{24+i}, s[48:51], 0 offen")
    for rr in range(4):
        for mu in range(8):
            if (mu, rr) == (0, 0):
                continue
            off = 512 * mu + 64 * rr - 32
            a(f"buffer_load_dwordx4 {vr(fa(mu,rr),4)}, v{vAOFF}, s[48:51], 0 offen offset:{off}")
            a(f"buffer_load_dword v{D4+8*rr+mu}, v{vAOFF}, s[48:51], 0 offen offset:{off+16}")
    a.c("B fragment base and zero pad")
    a(f"""
    s_mul_i32 s6, s{sCP}, 4608
    s_add_u32 s6, s6, {L_R}
    v_lshlrev_b32 v13, 4, v12
    v_lshlrev_b32 v14, 5, v11
    v_sub_u32 v13, v13, v14
    s_lshl_b32 s7, s{sHH}, 8
    s_add_u32 s7, s7, s6
    s_add_u32 s7, s7, 480
    v_add_u32 v{vBADDR}, s7, v13
    v_lshlrev_b32 v13, 3, v1
    v_add_u32 v13, s6, v13
    v_mov_b32 v14, 0
    v_mov_b32 v15, 0
    ds_write_b64 v13, v[14:15] offset:4096
    """)


def m_conv_align(a):
    a.c("conv: shift the odd-start fragments by one element")
    for rr in range(4):
        for mu in range(8):
            f = fa(mu, rr)
            for i in range(4):
                hi = f + i + 1 if i < 3 else D4 + 8 * rr + mu
                a(f"v_alignbyte_b32 v{f+i}, v{hi}, v{f+i}, v{vSHIFT}")


def kvr_dma(a):
    a.c("conv: kv rows -> LDS")
    a(f"""
    v_lshlrev_b32 v13, 4, v1
    s_mul_i32 s6, s2, {2 * RS}
    """)
    for ch in range(2):
        a(f"s_mov_b32 m0, {L_R + 4608 * ch}")
        a(f"s_add_u32 s7, s6, {WS_KVR + RS * ch}")
        for j in range(4):
            a(f"buffer_load_dwordx4 v13, s[{SRD_WS}:{SRD_WS+3}], s7 offen offset:{1024*j} sc1 lds")


def stats_dma(a):
    a.c("conv: LN1 stats -> LDS")
    a("v_lshlrev_b32 v13, 4, v1")
    for j in range(4):
        a(f"s_mov_b32 m0, {L_ST + 4096 * j}")
        a(f"s_mov_b32 s7, {WS_ST1 + 4096 * j}")
        for i in range(4):
            a(f"buffer_load_dwordx4 v13, s[{SRD_WS}:{SRD_WS+3}], s7 offen offset:{1024*i} sc1 lds")


def m_conv_main(a):
    a.c("conv: x values of the epilogue, ssm_D")
    a(f"""
    s_mul_i32 s6, s{sCH}, {RS}
    s_lshl_b32 s7, s{sHH}, 11
    s_add_u32 s6, s6, s7
    s_add_u32 s8, s6, {WS_XT}
    s_add_u32 s{sHTO}, s6, {WS_HT}
    v_lshlrev_b32 v5, 5, v11
    v_lshl_add_u32 v5, v12, 3, v5
    """)
    for i in range(4):
        a(f"buffer_load_dwordx2 {vr(XR+2*i,2)}, v5, s[{SRD_WS}:{SRD_WS+3}], s8 offen offset:{512*i} sc1")

    def reads(rr):
        return [f"ds_read_b128 {vr(BS[rr&1]+4*nu,4)}, v{vBADDR} offset:{512*(7-nu)+64*rr}" for nu in range(8)]

    a.c("conv: main loop")
    for ln in reads(0) + reads(1):
        a(ln)
    for rr in range(4):
        mf = []
        for nu in range(8):
            if rr == 0:
                mf.append(f"s_waitcnt lgkmcnt({15-nu})")
            for mu in range(8 - nu):
                i = mu + nu
                c = "0" if (rr == 0 and nu == 0) else vr(ACC + 4 * i, 4)
                mf.append(f"v_mfma_f32_16x16x32_bf16 {vr(ACC+4*i,4)}, {vr(fa(mu,rr),4)}, {vr(BS[rr&1]+4*nu,4)}, {c}")
        if rr > 0:
            a("s_waitcnt lgkmcnt(0)")
        nxt = reads(rr + 1) if rr in (1, 2) else []
        for ln in interleave(mf, nxt, 1, 25):
            a(ln)


def m_conv_exchange_write(a):
    a.c("conv: exchange partial sums with the partner wave")
    lab = a.label("cx")
    a(f"""
    s_lshl_b32 s6, s4, 12
    s_add_u32 s6, s6, {L_EX}
    v_lshlrev_b32 v13, 4, v1
    v_add_u32 v14, s6, v13
    s_xor_b32 s6, s4, 1
    s_lshl_b32 s6, s6, 12
    s_add_u32 s6, s6, {L_EX}
    v_add_u32 v15, s6, v13
    s_nop 7
    s_cmp_eq_u32 s{sHH}, 0
    s_cbranch_scc1 {lab}_h0
    """)
    for i in range(4):
        a(f"ds_write_b128 v14, {vr(ACC+4*i,4)} offset:{1024*i}")
    a("s_nop 1")
    for i in range(16):
        a(f"v_mov_b32 v{ACC+i}, v{ACC+16+i}")
    a(f"s_branch {lab}_done")
    a(f"{lab}_h0:")
    for i in range(4):
        a(f"ds_write_b128 v14, {vr(ACC+16+4*i,4)} offset:{1024*i}")
    a(f"{lab}_done:")
    a("s_waitcnt lgkmcnt(0)")


def m_conv_epilogue(a):
    a.c("conv: epilogue  h = x + (x - mean) * rstd * (y + kv * D)")
    P, KV, ST = 48, 64, 72
    a(f"""
    s_mul_i32 s6, s{sCP}, 4608
    s_lshl_b32 s7, s{sHH}, 11
    s_sub_u32 s6, s6, s7
    s_add_u32 s6, s6, {L_R + 4088 - 1536}
    v_sub_u32 v6, s6, v5
    s_lshl_b32 s7, s{sHH}, 13
    s_add_u32 s7, s7, {L_ST}
    v_lshlrev_b32 v4, 2, v5
    v_add_u32 v4, s7, v4
    """)
    for i in range(4):
        a(f"ds_read_b128 {vr(P+4*i,4)}, v15 offset:{1024*i}")
        a(f"ds_read_b64 {vr(KV+2*i,2)}, v6 offset:{512*(3-i)}")
    for i in range(4):
        a(f"ds_read_b128 {vr(ST+8*i,4)}, v4 offset:{2048*i}")
        a(f"ds_read_b128 {vr(ST+8*i+4,4)}, v4 offset:{2048*i+16}")
    a(f"""
    s_lshl_b32 s6, s{sDV}, 16
    s_and_b32 s7, s{sDV}, s{sMASK}
    s_cmp_eq_u32 s{sCP}, 0
    s_cselect_b32 s{sDV}, s6, s7
    v_and_b32 v2, 1, v12
    v_lshrrev_b32 v3, 1, v12
    v_lshlrev_b32 v2, 9, v2
    v_lshl_add_u32 v2, v3, 4, v2
    v_lshl_add_u32 v2, v11, 5, v2
    s_waitcnt vmcnt(0)
    """)
    T = 104
    O = 120
    for i in range(4):
        a(f"s_waitcnt lgkmcnt({6 - 2*i})")
        acc = ACC + 4 * i
        a(f"v_pk_add_f32 {vr(acc,2)}, {vr(acc,2)}, {vr(P+4*i,2)}")
        a(f"v_pk_add_f32 {vr(acc+2,2)}, {vr(acc+2,2)}, {vr(P+4*i+2,2)}")
        k0, k1 = KV + 2 * i, KV + 2 * i + 1
        x0, x1 = XR + 2 * i, XR + 2 * i + 1
        a(f"v_and_b32 v{T}, s{sMASK}, v{k1}")
        a(f"v_lshlrev_b32 v{T+1}, 16, v{k1}")
        a(f"v_and_b32 v{T+2}, s{sMASK}, v{k0}")
        a(f"v_lshlrev_b32 v{T+3}, 16, v{k0}")
        a(f"v_lshlrev_b32 v{T+4}, 16, v{x0}")
        a(f"v_and_b32 v{T+5}, s{sMASK}, v{x0}")
        a(f"v_lshlrev_b32 v{T+6}, 16, v{x1}")
        a(f"v_and_b32 v{T+7}, s{sMASK}, v{x1}")
        for e in range(4):
            a(f"v_fmac_f32 v{acc+e}, s{sDV}, v{T+e}")
        for e in range(4):
            a(f"v_sub_f32 v{T+e}, v{T+4+e}, v{ST+8*i+2*e}")
        for e in range(4):
            a(f"v_mul_f32 v{T+e}, v{T+e}, v{ST+8*i+2*e+1}")
        for e in range(4):
            a(f"v_fmac_f32 v{T+4+e}, v{T+e}, v{acc+e}")
        a(f"v_cvt_pk_bf16_f32 v{O+2*i}, v{T+4}, v{T+5}")
        a(f"v_cvt_pk_bf16_f32 v{O+2*i+1}, v{T+6}, v{T+7}")
        if i & 1:
            o = O + 2 * (i - 1)
            a("s_nop 1")
            a(f"v_permlane16_swap_b32 v{o}, v{o+2}")
            a(f"v_permlane16_swap_b32 v{o+1}, v{o+3}")
            a(f"buffer_store_dwordx4 {vr(o,4)}, v2, s[{SRD_WS}:{SRD_WS+3}], s{sHTO} offen offset:{512*(i-1)} sc1")
    a("s_waitcnt vmcnt(0)")
```

```python
from common import *
from p0 import *

NS = 7
WSLOT, HSLOT = 14336, 8192
L_PART = LMISC
L_COEF = LMISC + 4096
L_HS = LMISC - 30720
sRB, sFB, sGI = 76, 77, 78
sEX56 = 80
sLW = 82
sM0W, sM0H = 83, 84


def tile_ids(a):
    a(f"""
    s_and_b32 s6, s2, 7
    s_lshr_b32 s7, s2, 3
    s_lshr_b32 s8, s6, 1
    s_lshl_b32 s8, s8, 2
    s_and_b32 s9, s7, 3
    s_add_u32 s{sRB}, s8, s9
    s_and_b32 s8, s6, 1
    s_lshl_b32 s8, s8, 3
    s_lshr_b32 s9, s7, 2
    s_add_u32 s{sFB}, s8, s9
    s_lshl_b32 s8, s{sRB}, 4
    s_add_u32 s{sGI}, s8, s{sFB}
    """)


vWO, vHO0, vHO1, vSR0, vSR1 = 2, 3, 4, 5, 6
SUM1, SUM2 = 32, 40
RD = 48
UN = 64
HSA = 80
vHSO = 87


def l_setup(a):
    a.c("GEMM1 loader setup")
    tile_ids(a)
    a.srd(48, sW1, D * F * 2)
    a.srd(52, sW3, D * F * 2)
    a(f"""
    s_mov_b32 s{sEX56}, -1
    s_mov_b32 s{sEX56+1}, 0x00ffffff
    v_mul_u32_u24 v8, 4682, v1
    v_lshrrev_b32 v8, 16, v8             ; lane / 14
    v_mul_u32_u24 v9, 14, v8
    v_sub_u32 v9, v1, v9                 ; lane % 14
    v_mul_u32_u24 v8, {F*2}, v8
    v_lshl_add_u32 v8, v9, 4, v8
    s_mul_i32 s6, s{sFB}, 224
    s_mul_i32 s7, s{sWAVE}, {8 * F * 2}
    s_add_u32 s6, s6, s7
    v_add_u32 v{vWO}, s6, v8
    s_mul_i32 s{sM0W}, s{sWAVE}, 1792
    s_lshl_b32 s{sM0H}, s{sWAVE}, 11
    s_add_u32 s{sM0H}, s{sM0H}, {LH}
    v_lshrrev_b32 v8, 4, v1              ; row
    v_and_b32 v9, 15, v1
    v_lshlrev_b32 v10, 1, v8
    v_xor_b32 v9, v9, v10                ; c ^ 2 row
    v_xor_b32 v10, 8, v9
    v_mul_u32_u24 v11, {RS}, v8
    s_mul_i32 s6, s{sWAVE}, {8 * RS}
    s_lshl_b32 s7, s{sRB}, 8
    s_add_u32 s6, s6, s7
    s_add_u32 s6, s6, {WS_HT}
    v_add_u32 v11, s6, v11
    v_lshl_add_u32 v{vHO0}, v9, 4, v11
    v_lshl_add_u32 v{vHO1}, v10, 4, v11
    v_add_u32 v{vHO1}, {4 * RS}, v{vHO1}
    v_lshlrev_b32 v11, 8, v8
    v_add_u32 v11, s{sM0H}, v11
    v_lshl_add_u32 v{vSR0}, v9, 4, v11
    v_lshl_add_u32 v{vSR1}, v10, 4, v11
    v_add_u32 v{vSR1}, 1024, v{vSR1}
    """)
    a.c("H staging read-back addresses: chunk n = 256 r + tid")
    for r in range(7):
        a(f"""
        v_add_u32 v8, {256 * r}, v0
        v_mul_u32_u24 v9, 4682, v8
        v_lshrrev_b32 v9, 16, v9
        v_lshlrev_b32 v8, 4, v8
        v_lshl_add_u32 v8, v9, 4, v8
        v_add_u32 v{HSA + r}, {L_HS}, v8
        """)
    a(f"v_lshlrev_b32 v{vHSO}, 4, v0")
    for i in range(16):
        a(f"v_mov_b32 v{SUM1 + i}, 0")


def w_dma(a, s):
    slot = s % NS
    a(f"s_mov_b64 exec, s[{sEX56}:{sEX56+1}]")
    for q in range(2):
        a(f"s_mov_b32 s{8+q}, {(32 * s + 4 * q) * F * 2}")
    for m in range(2):
        for q in range(2):
            a(f"s_add_u32 m0, s{sM0W}, {LW + slot * WSLOT + 7168 * m + 896 * q}")
            a("s_nop 0")
            a(f"buffer_load_dwordx4 v{vWO}, s[{48+4*m}:{51+4*m}], s{8+q} offen lds")
    a("s_mov_b64 exec, -1")


def h_dma(a, s):
    slot = s % NS
    a(f"s_add_u32 m0, s{sM0H}, {slot * HSLOT}")
    a(f"s_mov_b32 s8, {32 * s * RS}")
    a(f"buffer_load_dwordx4 v{vHO0}, s[{SRD_WS}:{SRD_WS+3}], s8 offen sc1 lds")
    a(f"s_add_u32 m0, s{sM0H}, {slot * HSLOT + 1024}")
    a("s_nop 0")
    a(f"buffer_load_dwordx4 v{vHO1}, s[{SRD_WS}:{SRD_WS+3}], s8 offen sc1 lds")


def l_prefill_w(a):
    a.c("GEMM1: weight ring prefill")
    for s in range(NS):
        w_dma(a, s)


def stats(a, stages):
    for j, s in enumerate(stages):
        off = (s % NS) * HSLOT
        a(f"ds_read_b128 {vr(RD + 8*j, 4)}, v{vSR0} offset:{off}")
        a(f"ds_read_b128 {vr(RD + 8*j + 4, 4)}, v{vSR1} offset:{off}")
    for j in range(2 * len(stages)):
        a(f"s_waitcnt lgkmcnt({2 * len(stages) - 1 - j})")
        u = UN + 8 * (j & 1)
        for d in range(4):
            a(f"v_lshlrev_b32 v{u + 2*d}, 16, v{RD + 4*j + d}")
            a(f"v_and_b32 v{u + 2*d + 1}, s{sMASK}, v{RD + 4*j + d}")
        for e in range(8):
            a(f"v_add_f32 v{SUM1 + e}, v{SUM1 + e}, v{u + e}")
            a(f"v_fmac_f32 v{SUM2 + e}, v{u + e}, v{u + e}")


def l_main(a):
    a.c("GEMM1 loader loop")
    for s in range(NS):
        h_dma(a, s)
    issued = [(s, 2) for s in range(NS)]

    def wait_for(stage):
        n = 0
        for s, k in reversed(issued):
            if s <= stage:
                break
            n += k
        a(f"s_waitcnt vmcnt({n})")

    wait_for(1)
    a("s_barrier")
    stats(a, [0, 1])
    wait_for(3)
    a("s_barrier")
    for n in range(7):
        for s in (2 * n + 7, 2 * n + 8):
            if s < 16:
                w_dma(a, s)
                h_dma(a, s)
                issued.append((s, 6))
        stats(a, [2 * n + 2, 2 * n + 3])
        if n < 6:
            wait_for(2 * n + 5)
            a("s_barrier")
    a.c("LN2 partial sums of this wave")
    a("s_nop 1")
    for e in range(8):
        a(f"v_permlane32_swap_b32 v{SUM1 + e}, v{SUM2 + e}")
    a("s_nop 1")
    for e in range(8):
        a(f"v_add_f32 v{SUM1 + e}, v{SUM1 + e}, v{SUM2 + e}")
    a("s_nop 1")
    for e in range(4):
        a(f"v_permlane16_swap_b32 v{SUM1 + e}, v{SUM1 + 4 + e}")
    a("s_nop 1")
    for e in range(4):
        a(f"v_add_f32 v{SUM1 + e}, v{SUM1 + e}, v{SUM1 + 4 + e}")
    a(f"""
    v_lshrrev_b32 v8, 5, v1              ; stat
    v_lshlrev_b32 v8, 9, v8
    v_and_b32 v9, 15, v1
    v_lshl_add_u32 v8, v9, 5, v8
    v_bfe_u32 v9, v1, 4, 1
    v_lshl_add_u32 v8, v9, 4, v8
    s_lshl_b32 s6, s{sWAVE}, 10
    s_add_u32 s6, s6, {L_PART}
    v_add_u32 v8, s6, v8
    ds_write_b128 v8, {vr(SUM1, 4)}
    s_waitcnt lgkmcnt(0)
    s_barrier
    """)
    a.c("LN2 coefficients: lanes 0..31 take 32 rows per wave")
    a(f"""
    v_and_b32 v8, 31, v1
    s_lshl_b32 s6, s{sWAVE}, 5
    v_add_u32 v8, s6, v8                 ; row
    v_lshlrev_b32 v9, 2, v8
    v_add_u32 v9, {L_PART}, v9
    """)
    for w in range(4):
        a(f"ds_read_b32 v{48 + w}, v9 offset:{1024 * w}")
        a(f"ds_read_b32 v{52 + w}, v9 offset:{1024 * w + 512}")
    a(f"""
    v_lshlrev_b32 v8, 4, v8
    v_add_u32 v8, {L_COEF}, v8
    s_waitcnt lgkmcnt(0)
    v_add_f32 v48, v48, v49
    v_add_f32 v50, v50, v51
    v_add_f32 v52, v52, v53
    v_add_f32 v54, v54, v55
    v_add_f32 v48, v48, v50
    v_add_f32 v52, v52, v54
    v_mul_f32 v56, 0xbb000000, v48       ; -mean
    v_mul_f32 v52, 0x3b000000, v52
    v_fma_f32 v52, -v56, v56, v52
    v_max_f32 v52, 0, v52
    v_add_f32 v58, 0x3727c5ac, v52
    v_rsq_f32 v57, v58
    v_mov_b32 v59, 0
    v_mul_f32 v57, 0xbfb8aa3b, v57
    ds_write_b128 v8, v[56:59]
    s_waitcnt lgkmcnt(0)
    s_barrier
    """)


def l_store_h(a):
    a.c("GEMM1: H tile stores")
    a(f"s_mul_i32 s6, s{sGI}, 28672")
    a(f"s_add_u32 s6, s6, {WS_H}")
    for r in range(7):
        a(f"ds_read_b128 {vr(32 + 4*r, 4)}, v{HSA + r}")
    for r in range(7):
        a(f"s_waitcnt lgkmcnt({6 - r})")
        a(f"buffer_store_dwordx4 {vr(32 + 4*r, 4)}, v{vHSO}, s[{SRD_WS}:{SRD_WS+3}], s6 offen sc1")
        if r < 6:
            a("s_add_u32 s6, s6, 4096")


ACC = 16
SET = (128, 176)
CSR = 224
vWA0, vWA1, vW30, vW31 = 2, 3, 4, 5
vH = 6
vS0, vS1, vS3, vCO = 10, 11, 12, 13


def acc(p, gu, sl):
    u = (2 * p + gu) * 4 + sl if p < 3 else 24 + 2 * gu + sl
    return ACC + 4 * u


def m_setup(a):
    a.c("GEMM1 matrix-wave setup")
    tile_ids(a)
    a(f"""
    s_and_b32 s6, s4, 1                  ; wt
    s_lshr_b32 s7, s4, 1                 ; wf
    v_lshrrev_b32 v14, 2, v1             ; row 0..15
    v_and_b32 v15, 3, v1
    v_lshlrev_b32 v15, 3, v15
    v_mul_u32_u24 v16, 224, v14
    v_add_u32 v16, v16, v15
    s_lshl_b32 s8, s7, 7
    v_add_u32 v{vWA0}, s8, v16
    v_add_u32 v{vWA1}, {4 * WSLOT}, v{vWA0}
    v_add_u32 v{vW30}, 96, v16
    v_add_u32 v{vW31}, {4 * WSLOT + 96}, v16
    v_lshl_add_u32 v16, v14, 8, v15
    v_add_u32 v16, {LH}, v16
    v_and_b32 v17, 7, v14
    s_lshl_b32 s8, s6, 2
    s_lshl_b32 s9, s7, 1
    """)
    for sl in range(4):
        a(f"""
        s_xor_b32 s10, s9, {sl}
        s_add_u32 s10, s10, s8
        v_xor_b32 v18, s10, v17
        v_lshl_add_u32 v{vH + sl}, v18, 5, v16
        """)
    a(f"""
    v_and_b32 v14, 15, v1
    v_lshrrev_b32 v15, 4, v1
    s_add_u32 s10, s8, s9
    s_lshl_b32 s10, s10, 4
    v_add_u32 v16, s10, v14
    v_lshlrev_b32 v{vCO}, 4, v16
    v_add_u32 v{vCO}, {L_COEF}, v{vCO}
    v_and_b32 v17, 1, v15
    v_lshl_add_u32 v16, v17, 4, v16
    v_mul_u32_u24 v16, 240, v16
    v_lshrrev_b32 v17, 1, v15
    v_lshl_add_u32 v16, v17, 4, v16
    v_add_u32 v{vS3}, {L_HS + 96}, v16
    s_lshl_b32 s10, s7, 7
    s_add_u32 s10, s10, {L_HS}
    v_add_u32 v{vS0}, s10, v16
    s_mul_i32 s10, s7, {-2 * 32 * 240}
    s_add_u32 s10, s10, {32 * 240}
    v_add_u32 v{vS1}, s10, v{vS0}        ; slots 2,3
    s_mul_i32 s{sLW}, s7, -1024
    s_add_u32 s{sLW}, s{sLW}, 512
    v_lshlrev_b32 v14, 4, v15
    s_mul_i32 s10, s{sFB}, 448
    s_add_u32 s10, s10, {WS_CS}
    s_lshl_b32 s11, s7, 8
    s_add_u32 s11, s11, s10
    """)


def m_cs_loads(a):
    for p in range(4):
        for gu in range(2):
            so, off = (11, 64 * p) if p < 3 else (10, 192)
            if gu:
                a(f"s_add_u32 s12, s{so}, {F * 4}")
                so = 12
            a(f"buffer_load_dwordx4 {vr(CSR + 8*p + 4*gu, 4)}, v14, s[{SRD_WS}:{SRD_WS+3}], s{so} offen offset:{off} sc1")


def frag_reads(s):
    slot = s % NS
    b = SET[s & 1]
    wa, w3 = (vWA0, vW30) if slot < 4 else (vWA1, vW31)
    wo = (slot % 4) * WSLOT
    ho = slot * HSLOT

    def wf(p, gu):
        r = b + 4 * (2 * p + gu)
        ad, o = (wa, wo + 32 * p + 7168 * gu) if p < 3 else (w3, wo + 7168 * gu)
        return [f"ds_read_b64_tr_b16 {vr(r,2)}, v{ad} offset:{o}", f"ds_read_b64_tr_b16 {vr(r+2,2)}, v{ad} offset:{o + 3584}"]

    def hf(sl):
        r = b + 32 + 4 * sl
        return [f"ds_read_b64_tr_b16 {vr(r,2)}, v{vH + sl} offset:{ho}", f"ds_read_b64_tr_b16 {vr(r+2,2)}, v{vH + sl} offset:{ho + 4096}"]

    out = hf(0) + wf(0, 0) + hf(1) + hf(2) + hf(3) + wf(0, 1)
    for p in range(1, 4):
        out += wf(p, 0) + wf(p, 1)
    return out


def mfmas(s):
    b = SET[s & 1]
    out = []
    for p in range(4):
        for gu in range(2):
            for sl in range(4 if p < 3 else 2):
                d = vr(acc(p, gu, sl), 4)
                c = "0" if s == 0 else d
                out.append(f"v_mfma_f32_16x16x32_bf16 {d}, {vr(b + 4*(2*p+gu), 4)}, {vr(b + 32 + 4*sl, 4)}, {c}")
    return out


def m_main(a):
    m_cs_loads(a)
    a.c("GEMM1 main loop")
    a("s_barrier")
    for ln in frag_reads(0):
        a(ln)
    for s in range(16):
        a("s_waitcnt lgkmcnt(0)")
        if s & 1 and s < 15:
            a("s_barrier")
        if s == 15:
            a("s_barrier")
        nxt = frag_reads(s + 1) if s < 15 else []
        for ln in interleave(mfmas(s), nxt, 0, 24):
            a(ln)
    a("s_barrier")
    m_epilogue(a)


def m_epilogue(a):
    a.c("GEMM1 epilogue")
    CO = 128
    a(f"v_add_u32 v14, s{sLW}, v{vCO}")
    a(f"ds_read_b128 {vr(CO, 4)}, v{vCO}")
    a(f"ds_read_b128 {vr(CO + 4, 4)}, v{vCO} offset:256")
    a(f"ds_read_b128 {vr(CO + 8, 4)}, v14")
    a(f"ds_read_b128 {vr(CO + 12, 4)}, v14 offset:256")
    a("s_waitcnt vmcnt(0) lgkmcnt(0)")
    lolo = "op_sel:[0,0,0] op_sel_hi:[1,0,1]"
    units = [(p, pi) for pi in range(2) for p in range(4) if not (p == 3 and pi == 1)]
    for n, (p, pi) in enumerate(units):
        T = 144 + 16 * (n & 1)
        O = T + 8
        st = []
        sls = (2 * pi, 2 * pi + 1)
        for k, sl in enumerate(sls):
            for hh in range(2):
                g, u = acc(p, 0, sl) + 2 * hh, acc(p, 1, sl) + 2 * hh
                cg, cu = CSR + 8 * p + 2 * hh, CSR + 8 * p + 4 + 2 * hh
                q = CO + 4 * sl
                a(f"v_pk_fma_f32 {vr(g,2)}, {vr(cg,2)}, {vr(q,2)}, {vr(g,2)} {lolo}")
                a(f"v_pk_fma_f32 {vr(u,2)}, {vr(cu,2)}, {vr(q,2)}, {vr(u,2)} {lolo}")
        for k, sl in enumerate(sls):
            for hh in range(2):
                g = acc(p, 0, sl) + 2 * hh
                q = CO + 4 * sl
                a(f"v_pk_mul_f32 {vr(T + 4*k + 2*hh, 2)}, {vr(g,2)}, {vr(q,2)} op_sel:[0,1] op_sel_hi:[1,1]")
        for e in range(8):
            a(f"v_exp_f32 v{T + e}, v{T + e}")
        for k, sl in enumerate(sls):
            for hh in range(2):
                g, u = acc(p, 0, sl) + 2 * hh, acc(p, 1, sl) + 2 * hh
                a(f"v_pk_mul_f32 {vr(g,2)}, {vr(g,2)}, {vr(u,2)}")
        for k, sl in enumerate(sls):
            for hh in range(2):
                t = vr(T + 4 * k + 2 * hh, 2)
                c = vr(CO + 4 * sl + 2, 2)
                a(f"v_pk_fma_f32 {t}, {t}, {c}, {c} op_sel:[0,0,0] op_sel_hi:[1,0,0]")
        for e in range(8):
            a(f"v_rcp_f32 v{T + e}, v{T + e}")
        a("s_nop 0")
        for k, sl in enumerate(sls):
            for hh in range(2):
                g = acc(p, 0, sl) + 2 * hh
                a(f"v_pk_mul_f32 {vr(g,2)}, {vr(g,2)}, {vr(T + 4*k + 2*hh, 2)}")
        for k, sl in enumerate(sls):
            for hh in range(2):
                g = acc(p, 0, sl) + 2 * hh
                a(f"v_cvt_pk_bf16_f32 v{O + 2*k + hh}, v{g}, v{g+1}")
        a("s_nop 1")
        a(f"v_permlane16_swap_b32 v{O}, v{O + 2}")
        a(f"v_permlane16_swap_b32 v{O + 1}, v{O + 3}")
        ad, off = ((vS0, vS1)[pi], 32 * p) if p < 3 else (vS3, 0)
        a(f"ds_write_b128 v{ad}, {vr(O, 4)} offset:{off}")
    a("s_waitcnt lgkmcnt(0)")
```

```python
from common import *
from p0 import *
from sync import *
import gemm1
from gemm1 import sRB, sFB, sGI

NLEFT = 6
RSLOT = 28672
LA = 4 * RSLOT
L_HR = LA
L_X2 = LA + 8192
R1_UNITS = list(range(6, 21))
R2_UNITS = list(range(21, 28))

vW2, vL16, vHR = 90, 91, 92
sW2M, sHG, sHM = 85, 86, 87


def l_setup(a):
    a.c("GEMM2 loader setup")
    a.srd(56, sW2, D * F * 2)
    a(f"""
    v_lshrrev_b32 v8, 3, v1
    v_and_b32 v9, 7, v1
    v_bfe_u32 v10, v1, 4, 1
    v_lshlrev_b32 v10, 1, v10
    v_xor_b32 v10, v9, v10
    s_and_b32 s6, s{sWAVE}, 1
    s_lshl_b32 s6, s6, 2
    v_xor_b32 v10, s6, v10
    v_lshlrev_b32 v11, 10, v8
    v_lshl_add_u32 v11, v10, 4, v11
    s_and_b32 s7, s{sFB}, 7              ; dc
    s_lshl_b32 s8, s7, 7
    s_lshl_b32 s9, s{sWAVE}, 13
    s_add_u32 s8, s8, s9
    v_add_u32 v{vW2}, s8, v11
    s_lshl_b32 s{sW2M}, s{sWAVE}, 10
    v_lshlrev_b32 v{vL16}, 4, v1
    v_bfe_u32 v10, v1, 4, 2
    v_lshlrev_b32 v10, 1, v10
    v_xor_b32 v10, v9, v10
    v_mul_u32_u24 v11, {RS}, v8
    v_lshl_add_u32 v11, v10, 4, v11
    s_lshl_b32 s8, s7, 6
    s_lshl_b32 s9, s{sWAVE}, 4
    s_add_u32 s8, s8, s9
    s_mul_i32 s8, s8, {RS}
    s_lshr_b32 s9, s{sFB}, 3             ; th
    s_lshl_b32 s10, s{sRB}, 8
    s_add_u32 s8, s8, s10
    s_lshl_b32 s10, s9, 7
    s_add_u32 s8, s8, s10
    s_add_u32 s8, s8, {WS_HT}
    v_add_u32 v{vHR}, s8, v11
    s_lshl_b32 s8, s{sRB}, 4
    s_lshr_b32 s10, s{sWAVE}, 1
    s_lshl_b32 s10, s10, 3
    s_add_u32 s8, s8, s10
    s_mul_i32 s8, s8, 28672
    s_mul_i32 s9, s9, 14336
    s_add_u32 s8, s8, s9
    s_and_b32 s10, s{sWAVE}, 1
    s_mul_i32 s10, s10, 7168
    s_add_u32 s8, s8, s10
    s_add_u32 s{sHG}, s8, {WS_H}
    s_mul_i32 s{sHM}, s{sWAVE}, 7168
    """)


def w2_dma(a, ks, lds):
    for kh in range(2):
        a(f"s_add_u32 m0, s{sW2M}, {lds + 4096 * kh}")
        a(f"s_mov_b32 s8, {(896 * kh + 32 * ks) * 1024}")
        a(f"buffer_load_dwordx4 v{vW2}, s[56:59], s8 offen lds")


def h_dma(a, s):
    slot = (s % 4) * RSLOT
    for part, cnt in ((0, 4), (4096, 3)):
        a(f"s_add_u32 m0, s{sHM}, {slot + part}")
        a(f"s_add_u32 s8, s{sHG}, {s * 28672 + part}")
        for j in range(cnt):
            a(f"buffer_load_dwordx4 v{vL16}, s[{SRD_WS}:{SRD_WS+3}], s8 offen offset:{1024*j} sc1 lds")


def l_main(a, only_wave):
    a.c("GEMM2 loader: w2 first round")
    for i, ks in enumerate(R1_UNITS):
        w2_dma(a, ks, 8192 * i)
    a("s_barrier")
    gemm1.l_store_h(a)
    a("s_waitcnt vmcnt(7)")
    a("s_barrier")
    a("s_waitcnt vmcnt(0)")
    a("s_barrier")
    only_wave(a, 0, lambda: post(a, F3, sGI, 8))
    for i, ks in enumerate(R2_UNITS):
        w2_dma(a, ks, 2 * RSLOT + 8192 * i)
    for ks in range(NLEFT):
        w2_dma(a, ks, LA + 8192 * ks)
    a("s_waitcnt vmcnt(0)")
    a("s_barrier")
    h_dma(a, 0)
    h_dma(a, 1)
    a("s_barrier")
    h_dma(a, 2)
    h_dma(a, 3)
    a("s_waitcnt vmcnt(21)")
    a("s_barrier")
    a("s_waitcnt vmcnt(14)")
    a("s_barrier")
    a("s_waitcnt vmcnt(7)")
    a("s_barrier")
    h_dma(a, 4)
    h_dma(a, 5)
    a(f"s_lshl_b32 s9, s{sWAVE}, 11")
    a(f"s_add_u32 m0, s9, {L_HR}")
    a("s_nop 0")
    a(f"buffer_load_dwordx4 v{vHR}, s[{SRD_WS}:{SRD_WS+3}], 0 offen sc1 lds")
    a(f"s_add_u32 m0, s9, {L_HR + 1024}")
    a(f"s_mov_b32 s8, {8 * RS}")
    a(f"buffer_load_dwordx4 v{vHR}, s[{SRD_WS}:{SRD_WS+3}], s8 offen sc1 lds")
    a("s_waitcnt vmcnt(16)")
    a("s_barrier")
    a("s_waitcnt vmcnt(9)")
    a("s_barrier")
    h_dma(a, 6)
    h_dma(a, 7)
    a("s_waitcnt vmcnt(16)")
    a("s_barrier")
    a("s_waitcnt vmcnt(7)")
    a("s_barrier")
    a("s_waitcnt vmcnt(0)")
    a("s_barrier")
    a("s_barrier")


W2R = 80
ACC = 8
HF = (40, 56)
W2T = 72
vB0, vB1, vSt0, vSt1, vWa, vWb = 0, 1, 2, 3, 4, 5
sKH, sDH = 85, 86


def w2reg(ks, db):
    return (W2R + 8 * (ks - NLEFT) if ks >= NLEFT else W2T) + 4 * db


def w2_reads(ks, off):
    out = []
    for db in range(2):
        r = w2reg(ks, db)
        out.append(f"ds_read_b64_tr_b16 {vr(r,2)}, v{vWa + db} offset:{off}")
        out.append(f"ds_read_b64_tr_b16 {vr(r+2,2)}, v{vWa + db} offset:{off + 512}")
    return out


def h_reads(j):
    c, r = divmod(j, 7)
    hi = c & 1
    if r < 3:
        ad, off = (vB0, vB1)[hi], 64 * r
    elif r == 3:
        ad, off = (vSt0, vSt1)[hi], 0
    else:
        ad, off = (vB0, vB1)[hi], RSLOT + 64 * (r - 4) + 32
    return [f"ds_read_b128 {vr(HF[j & 1] + 4*tb, 4)}, v{ad} offset:{off + 3584*tb}" for tb in range(4)]


def lane_id(a, v):
    a(f"v_mbcnt_lo_u32_b32 v{v}, -1, 0")
    a(f"v_mbcnt_hi_u32_b32 v{v}, -1, v{v}")


def m_main(a, only_wave):
    a.c("GEMM2 matrix-wave setup")
    a(f"""
    s_and_b32 s{sKH}, s4, 1
    s_lshr_b32 s{sDH}, s4, 1
    v_mov_b32 v7, v1
    v_lshrrev_b32 v40, 4, v7             ; g
    v_and_b32 v41, 15, v7                ; i
    v_lshrrev_b32 v42, 2, v41
    v_lshl_add_u32 v42, v40, 3, v42      ; row = 8 g + (i >> 2)
    v_lshlrev_b32 v42, 7, v42
    v_and_b32 v43, 3, v7
    v_lshl_add_u32 v42, v43, 3, v42
    v_bfe_u32 v43, v7, 3, 2
    s_lshl_b32 s6, s{sDH}, 1
    v_xor_b32 v43, s6, v43
    s_lshl_b32 s7, s{sKH}, 12
    v_add_u32 v42, s7, v42
    v_lshl_add_u32 v{vWa}, v43, 5, v42
    v_xor_b32 v{vWb}, 32, v{vWa}
    v_mul_u32_u24 v42, 224, v41
    v_lshl_add_u32 v42, v40, 4, v42
    s_mul_i32 s7, s{sKH}, 14336
    v_add_u32 v{vB0}, s7, v42
    v_add_u32 v{vB1}, {2 * RSLOT}, v{vB0}
    v_mov_b32 v43, 192
    v_mov_b32 v44, {RSLOT - 32}
    v_cmp_gt_u32 vcc, 32, v7
    s_nop 1
    v_cndmask_b32 v43, v44, v43, vcc
    v_add_u32 v{vSt0}, v43, v{vB0}
    v_add_u32 v{vSt1}, v43, v{vB1}
    s_barrier
    s_barrier
    """)
    a.c("GEMM2: w2 first round -> registers")
    for i, ks in enumerate(R1_UNITS):
        if i == 7:
            a(f"v_add_u32 v{vWa}, {7 * 8192}, v{vWa}")
            a(f"v_add_u32 v{vWb}, {7 * 8192}, v{vWb}")
        for ln in w2_reads(ks, 8192 * (i % 7 if i < 14 else 7)):
            a(ln)
    a("s_waitcnt lgkmcnt(0)")
    a("s_barrier")

    def pl():
        a(f"s_lshl_b32 s10, s{sRB}, 4")
        poll(a, F3, 16, 7, 40, first_sgpr=10)
    only_wave(a, 4, pl)
    a("s_barrier")
    for i, ks in enumerate(R2_UNITS):
        for ln in w2_reads(ks, 8192 * i):
            a(ln)
    a(f"v_add_u32 v{vWa}, {LA - 2 * RSLOT}, v{vWa}")
    a(f"v_add_u32 v{vWb}, {LA - 2 * RSLOT}, v{vWb}")
    for ln in w2_reads(0, 0):
        a(ln)
    a("s_waitcnt lgkmcnt(0)")
    a("s_barrier")
    a.c("GEMM2 main loop")
    a("s_barrier")
    for ln in h_reads(0):
        a(ln)
    for j in range(28):
        a("s_waitcnt lgkmcnt(0)")
        if (j + 1) % 7 in (0, 3) and j < 27:
            a("s_barrier")
        mf = []
        for db in range(2):
            for tb in range(4):
                d = vr(ACC + 16 * db + 4 * tb, 4)
                c = "0" if j == 0 else d
                mf.append(f"v_mfma_f32_16x16x32_bf16 {d}, {vr(w2reg(j, db), 4)}, {vr(HF[j & 1] + 4*tb, 4)}, {c}")
        seq = interleave(mf, h_reads(j + 1) if j < 27 else [], 0, 4)
        if j + 1 < NLEFT:
            wr = w2_reads(j + 1, 8192 * (j + 1))
            k = seq.index(mf[3]) + 2
            seq = seq[:k] + wr[:2] + seq[k:] + wr[2:]
        for ln in seq:
            a(ln)
    m_epilogue(a)


def m_epilogue(a):
    a.c("GEMM2: exchange the K halves, add the residual, store")
    lab = a.label("x2")
    a.srd(56, sOUT, S * D * 2)
    a(f"""
    v_lshlrev_b32 v0, 4, v7
    s_lshl_b32 s6, s4, 12
    s_add_u32 s6, s6, {L_X2}
    v_add_u32 v1, s6, v0
    s_xor_b32 s6, s4, 1
    s_lshl_b32 s6, s6, 12
    s_add_u32 s6, s6, {L_X2}
    v_add_u32 v2, s6, v0
    s_cmp_eq_u32 s{sKH}, 0
    s_cbranch_scc1 {lab}_k0
    """)
    for db in range(2):
        for t in range(2):
            a(f"ds_write_b128 v1, {vr(ACC + 16*db + 4*t, 4)} offset:{1024 * (2*db + t)}")
    a("s_nop 1")
    for db in range(2):
        for i in range(8):
            a(f"v_mov_b32 v{ACC + 16*db + i}, v{ACC + 16*db + 8 + i}")
    a(f"s_branch {lab}_done")
    a(f"{lab}_k0:")
    for db in range(2):
        for t in range(2):
            a(f"ds_write_b128 v1, {vr(ACC + 16*db + 8 + 4*t, 4)} offset:{1024 * (2*db + t)}")
    a(f"{lab}_done:")
    a(f"""
    v_lshrrev_b32 v3, 2, v7
    v_lshlrev_b32 v3, 7, v3
    v_and_b32 v4, 3, v7
    v_lshl_add_u32 v3, v4, 3, v3
    v_bfe_u32 v4, v7, 3, 2
    s_lshl_b32 s6, s{sKH}, 1
    v_xor_b32 v4, s6, v4
    s_lshl_b32 s7, s{sDH}, 12
    s_add_u32 s7, s7, {L_HR}
    v_add_u32 v3, s7, v3
    v_lshl_add_u32 v3, v4, 5, v3
    v_xor_b32 v4, 32, v3
    v_and_b32 v5, 15, v7
    v_lshlrev_b32 v5, 10, v5
    v_bfe_u32 v6, v7, 4, 1
    v_lshl_add_u32 v5, v6, 5, v5
    v_lshrrev_b32 v6, 5, v7
    v_lshl_add_u32 v5, v6, 4, v5
    s_lshl_b32 s6, s{sRB}, 7
    s_lshr_b32 s7, s{sFB}, 3
    s_lshl_b32 s7, s7, 6
    s_add_u32 s6, s6, s7
    s_lshl_b32 s7, s{sKH}, 5
    s_add_u32 s6, s6, s7
    s_lshl_b32 s6, s6, 10
    s_and_b32 s7, s{sFB}, 7
    s_lshl_b32 s7, s7, 7
    s_add_u32 s6, s6, s7
    s_lshl_b32 s7, s{sDH}, 6
    s_add_u32 s6, s6, s7
    s_add_u32 s7, s6, 16384
    s_waitcnt lgkmcnt(0)
    s_barrier
    """)
    P, HR, U, O = 40, 56, 64, 72
    for t in range(2):
        for db in range(2):
            a(f"ds_read_b128 {vr(P + 8*db + 4*t, 4)}, v2 offset:{1024 * (2*db + t)}")
            a(f"ds_read_b64_tr_b16 {vr(HR + 4*db + 2*t, 2)}, v{3 + t} offset:{2048 * db}")
    for t in range(2):
        a(f"s_waitcnt lgkmcnt({4 - 4*t})")
        for db in range(2):
            c, p, hr = ACC + 16 * db + 4 * t, P + 8 * db + 4 * t, HR + 4 * db + 2 * t
            u = U + 4 * db
            a(f"v_lshlrev_b32 v{u}, 16, v{hr}")
            a(f"v_and_b32 v{u+1}, s{sMASK}, v{hr}")
            a(f"v_lshlrev_b32 v{u+2}, 16, v{hr+1}")
            a(f"v_and_b32 v{u+3}, s{sMASK}, v{hr+1}")
            for hh in range(2):
                a(f"v_pk_add_f32 {vr(c+2*hh,2)}, {vr(c+2*hh,2)}, {vr(p+2*hh,2)}")
            for hh in range(2):
                a(f"v_pk_add_f32 {vr(c+2*hh,2)}, {vr(c+2*hh,2)}, {vr(u+2*hh,2)}")
            for hh in range(2):
                a(f"v_cvt_pk_bf16_f32 v{O + 4*t + 2*db + hh}, v{c+2*hh}, v{c+2*hh+1}")
        a("s_nop 1")
        a(f"v_permlane16_swap_b32 v{O + 4*t}, v{O + 4*t + 2}")
        a(f"v_permlane16_swap_b32 v{O + 4*t + 1}, v{O + 4*t + 3}")
        a(f"buffer_store_dwordx4 {vr(O + 4*t, 4)}, v5, s[56:59], s{6 + t} offen")
```

```python
from common import *

LW = 0
LH = 100352
LMISC = 157696
L_T1 = LH
L_T2 = LH + 8192
L_CSP = LH + 16384
L_R = LH + 17408
L_ST = L_R + 9216
L_EX = LH

sMASK = 64
sSELLO, sSELHI = 65, 66


def l_tile_issue(a):
    a.c("P0 tile loads")
    a.srd(48, sK, S * D * 2)
    a.srd(52, sV, S * D * 2)
    a.srd(56, sX, S * D * 2)
    a.srd(60, sSH, D * 8)
    a(f"""
    s_lshr_b32 s4, s2, 5                 ; g
    s_and_b32 s5, s2, 31                 ; tt
    s_lshl_b32 s6, s5, 16                ; t0*1024
    s_lshl_b32 s7, s4, 7                 ; 128 g
    s_add_u32 s6, s6, s7
    v_and_b32 v1, 7, v0                  ; cg
    v_lshrrev_b32 v2, 3, v0              ; rp
    v_lshlrev_b32 v3, 11, v2
    v_lshl_add_u32 v3, v1, 4, v3
    v_add_u32 v3, s6, v3
    v_subrev_u32 v4, 3072, v3
    v_subrev_u32 v5, 2048, v3
    v_subrev_u32 v6, 1024, v3
    s_lshl_b32 s7, s4, 9
    v_lshlrev_b32 v7, 6, v1
    v_add_u32 v7, s7, v7
    buffer_load_dwordx4 v[20:23], v3, s[48:51], 0 offen
    buffer_load_dwordx4 v[24:27], v3, s[48:51], 0 offen offset:1024
    buffer_load_dwordx4 v[28:31], v3, s[52:55], 0 offen
    buffer_load_dwordx4 v[32:35], v3, s[52:55], 0 offen offset:1024
    buffer_load_dwordx4 v[16:19], v6, s[48:51], 0 offen
    buffer_load_dwordx4 v[12:15], v5, s[48:51], 0 offen
    buffer_load_dwordx4 v[8:11], v4, s[48:51], 0 offen
    buffer_load_dwordx4 v[44:47], v7, s[60:63], 0 offen
    buffer_load_dwordx4 v[48:51], v7, s[60:63], 0 offen offset:16
    buffer_load_dwordx4 v[52:55], v7, s[60:63], 0 offen offset:32
    buffer_load_dwordx4 v[56:59], v7, s[60:63], 0 offen offset:48
    buffer_load_dwordx4 v[36:39], v3, s[56:59], 0 offen
    buffer_load_dwordx4 v[40:43], v3, s[56:59], 0 offen offset:1024
    """)
    a.c("LDS write bases and read-back / store offsets")
    a(f"""
    v_lshlrev_b32 v60, 2, v1             ; 4 cg
    v_sub_u32 v61, 31, v2
    v_xor_b32 v61, v61, v60
    v_xor_b32 v62, v2, v60
    v_lshlrev_b32 v63, 10, v1
    v_lshl_add_u32 v61, v61, 2, v63
    v_lshl_add_u32 v62, v62, 2, v63
    v_add_u32 v61, {L_T1}, v61
    v_add_u32 v62, {L_T2}, v62
    v_lshrrev_b32 v63, 6, v0
    v_xor_b32 v63, v63, v1               ; j ^ (d>>3)
    v_lshlrev_b32 v63, 4, v63
    v_lshl_add_u32 v63, v2, 7, v63       ; d*128 + 16*(j^(d>>3))
    v_add_u32 v63, {L_T1}, v63
    v_xor_b32 v64, 64, v63
    v_add_u32 v64, 4096, v64             ; rows d+32
    s_lshl_b32 s7, s4, 6
    v_add_u32 v65, s7, v2                ; channel 64g + d
    s_movk_i32 s8, {RS}
    v_mul_lo_u32 v65, v65, s8
    v_lshl_add_u32 v65, v1, 4, v65       ; + 16 j
    s_lshl_b32 s9, s5, 7                 ; t0*2
    s_sub_u32 s10, {WS_KVR + 3968}, s9
    s_add_u32 s11, s10, {32 * RS}
    s_add_u32 s12, s9, {WS_XT}
    s_add_u32 s13, s12, {32 * RS}
    """)


def l_tile_compute(a):
    a.c("P0 tile compute")
    a("s_waitcnt vmcnt(2)")
    W, KU, VU, A_, B_, O = 68, 76, 86, 90, 92, 94
    for q in range(4):
        for half in range(2):
            d0, d1 = 44 + 4 * q + 2 * half, 45 + 4 * q + 2 * half
            a(f"v_lshlrev_b32 v{W + 0 + half}, 16, v{d0}")
            a(f"v_and_b32 v{W + 2 + half}, s{sMASK}, v{d0}")
            a(f"v_lshlrev_b32 v{W + 4 + half}, 16, v{d1}")
            a(f"v_and_b32 v{W + 6 + half}, s{sMASK}, v{d1}")
        for j in range(5):
            a(f"v_lshlrev_b32 v{KU + 2 * j}, 16, v{8 + 4 * j + q}")
            a(f"v_and_b32 v{KU + 2 * j + 1}, s{sMASK}, v{8 + 4 * j + q}")
        for j in range(2):
            a(f"v_lshlrev_b32 v{VU + 2 * j}, 16, v{28 + 4 * j + q}")
            a(f"v_and_b32 v{VU + 2 * j + 1}, s{sMASK}, v{28 + 4 * j + q}")
        k = lambda j: vr(KU + 2 * j, 2)
        w = lambda j: vr(W + 2 * j, 2)
        a(f"v_pk_mul_f32 {vr(A_,2)}, {w(3)}, {k(0)}")
        a(f"v_pk_mul_f32 {vr(B_,2)}, {w(3)}, {k(1)}")
        for tap in (2, 1, 0):
            a(f"v_pk_fma_f32 {vr(A_,2)}, {w(tap)}, {k(3 - tap)}, {vr(A_,2)}")
            a(f"v_pk_fma_f32 {vr(B_,2)}, {w(tap)}, {k(4 - tap)}, {vr(B_,2)}")
        a(f"v_pk_mul_f32 {vr(A_,2)}, {vr(A_,2)}, {vr(VU,2)}")
        a(f"v_pk_mul_f32 {vr(B_,2)}, {vr(B_,2)}, {vr(VU+2,2)}")
        o = O + 2 * q
        a(f"v_cvt_pk_bf16_f32 v{o}, v{B_}, v{A_}")
        a(f"v_cvt_pk_bf16_f32 v{o+1}, v{B_+1}, v{A_+1}")
        a(f"ds_write2_b32 v61, v{o}, v{o+1} offset0:{64*q} offset1:{64*q+32}")
    a("s_waitcnt vmcnt(0)")
    for q in range(4):
        o = 102 + 2 * q
        a(f"v_perm_b32 v{o}, v{40+q}, v{36+q}, s{sSELLO}")
        a(f"v_perm_b32 v{o+1}, v{40+q}, v{36+q}, s{sSELHI}")
        a(f"ds_write2_b32 v62, v{o}, v{o+1} offset0:{64*q} offset1:{64*q+32}")
    a("s_waitcnt lgkmcnt(0)")


def l_tile_store(a):
    a.c("P0 read-back and channel-major stores")
    a(f"""
    ds_read_b128 v[8:11], v63
    ds_read_b128 v[12:15], v64
    ds_read_b128 v[16:19], v63 offset:8192
    ds_read_b128 v[20:23], v64 offset:8192
    s_waitcnt lgkmcnt(3)
    buffer_store_dwordx4 v[8:11], v65, s[{SRD_WS}:{SRD_WS+3}], s10 offen sc1
    s_waitcnt lgkmcnt(2)
    buffer_store_dwordx4 v[12:15], v65, s[{SRD_WS}:{SRD_WS+3}], s11 offen sc1
    s_waitcnt lgkmcnt(1)
    buffer_store_dwordx4 v[16:19], v65, s[{SRD_WS}:{SRD_WS+3}], s12 offen sc1
    s_waitcnt lgkmcnt(0)
    buffer_store_dwordx4 v[20:23], v65, s[{SRD_WS}:{SRD_WS+3}], s13 offen sc1
    s_waitcnt vmcnt(0)
    """)


def m_stats_issue(a):
    a.c("LN1 stats: two rows per wave, 32 lanes per row")
    a.srd(56, sX, S * D * 2)
    a(f"""
    s_lshl_b32 s5, s2, 3
    s_lshl_b32 s6, s4, 1
    s_add_u32 s5, s5, s6
    v_lshrrev_b32 v2, 5, v1
    v_add_u32 v2, s5, v2                 ; row
    v_and_b32 v3, 31, v1
    v_lshlrev_b32 v3, 5, v3
    v_lshl_add_u32 v3, v2, 10, v3
    buffer_load_dwordx4 v[16:19], v3, s[56:59], 0 offen
    buffer_load_dwordx4 v[20:23], v3, s[56:59], 0 offen offset:16
    v_lshlrev_b32 v4, 3, v2
    v_add_u32 v4, {WS_ST1}, v4
    """)


def dpp_add(a, reg, ctrl):
    a(f"v_add_f32_dpp v{reg}, v{reg}, v{reg} {ctrl}")


def m_stats_finish(a, vm):
    a(f"s_waitcnt vmcnt({vm})")
    for i in range(8):
        a(f"v_lshlrev_b32 v{24+2*i}, 16, v{16+i}")
        a(f"v_and_b32 v{25+2*i}, s{sMASK}, v{16+i}")
    a("v_pk_mul_f32 v[42:43], v[24:25], v[24:25]")
    a("v_pk_add_f32 v[40:41], v[24:25], v[26:27]")
    a("v_pk_fma_f32 v[42:43], v[26:27], v[26:27], v[42:43]")
    for i in range(2, 8):
        a(f"v_pk_add_f32 v[40:41], v[40:41], {vr(24+2*i,2)}")
        a(f"v_pk_fma_f32 v[42:43], {vr(24+2*i,2)}, {vr(24+2*i,2)}, v[42:43]")
    a("v_add_f32 v40, v40, v41")
    a("v_add_f32 v41, v42, v43")
    for ctrl in ("quad_perm:[1,0,3,2] row_mask:0xf bank_mask:0xf", "quad_perm:[2,3,0,1] row_mask:0xf bank_mask:0xf",
                 "row_half_mirror row_mask:0xf bank_mask:0xf", "row_mirror row_mask:0xf bank_mask:0xf",
                 "row_bcast:15 row_mask:0xa bank_mask:0xf"):
        a("s_nop 1")
        dpp_add(a, 40, ctrl)
        dpp_add(a, 41, ctrl)
    a(f"""
    v_mul_f32 v40, 0x3b000000, v40       ; mean = S1/512
    v_mul_f32 v41, 0x3b000000, v41
    v_fma_f32 v41, -v40, v40, v41        ; var
    v_max_f32 v41, 0, v41
    v_add_f32 v41, 0x3727c5ac, v41       ; + 1e-5
    v_rsq_f32 v41, v41
    s_mov_b32 s6, 0x00010000
    s_mov_b32 s7, 0x00010000
    s_mov_b64 exec, s[6:7]
    buffer_store_dwordx2 v[40:41], v4, s[{SRD_WS}:{SRD_WS+3}], 0 offen sc1
    s_mov_b64 exec, -1
    """)


def m_cs_issue(a):
    a.c("column-sum loads")
    a(f"""
    s_cmp_lt_u32 s2, 112
    s_cselect_b32 s60, s{sW1}, s{sW3}
    s_cselect_b32 s61, s{sW1+1}, s{sW3+1}
    s_cselect_b32 s6, 0, 112
    s_sub_u32 s6, s2, s6
    s_cmp_lt_u32 s2, 224
    s_cselect_b32 s62, {D * F * 2}, 0
    s_mov_b32 s63, 0x00020000
    s_lshl_b32 s6, s6, 5
    s_mul_i32 s7, s4, {128 * F * 2}
    s_add_u32 s6, s6, s7
    v_lshrrev_b32 v5, 1, v1
    s_movk_i32 s8, {F * 2}
    v_mul_lo_u32 v5, v5, s8
    v_and_b32 v6, 1, v1
    v_lshl_add_u32 v5, v6, 4, v5
    s_add_u32 s7, s6, {32 * F * 2}
    s_add_u32 s8, s6, {64 * F * 2}
    s_add_u32 s9, s6, {96 * F * 2}
    buffer_load_dwordx4 v[48:51], v5, s[60:63], s6 offen
    buffer_load_dwordx4 v[52:55], v5, s[60:63], s7 offen
    buffer_load_dwordx4 v[56:59], v5, s[60:63], s8 offen
    buffer_load_dwordx4 v[60:63], v5, s[60:63], s9 offen
    """)


def m_cs_partial(a):
    a.c("column-sum partials")
    for q in range(4):
        a(f"v_lshlrev_b32 v{64+2*q}, 16, v{48+q}")
        a(f"v_and_b32 v{65+2*q}, s{sMASK}, v{48+q}")
    for i in range(1, 4):
        for q in range(4):
            a(f"v_lshlrev_b32 v{72+2*q}, 16, v{48+4*i+q}")
            a(f"v_and_b32 v{73+2*q}, s{sMASK}, v{48+4*i+q}")
        for q in range(4):
            a(f"v_pk_add_f32 {vr(64+2*q,2)}, {vr(64+2*q,2)}, {vr(72+2*q,2)}")
    for ctrl in ("quad_perm:[2,3,0,1] row_mask:0xf bank_mask:0xf", "row_ror:4 row_mask:0xf bank_mask:0xf",
                 "row_ror:8 row_mask:0xf bank_mask:0xf"):
        a("s_nop 1")
        for c in range(8):
            dpp_add(a, 64 + c, ctrl)
    a(f"""
    v_lshrrev_b32 v5, 4, v1
    v_lshlrev_b32 v5, 6, v5
    v_and_b32 v6, 1, v1
    v_lshl_add_u32 v5, v6, 5, v5
    s_lshl_b32 s6, s4, 8
    s_add_u32 s6, s6, {L_CSP}
    v_add_u32 v5, s6, v5
    s_mov_b32 s6, 0x00030003
    s_mov_b32 s7, 0x00030003
    s_mov_b64 exec, s[6:7]
    ds_write_b128 v5, v[64:67]
    ds_write_b128 v5, v[68:71] offset:16
    s_mov_b64 exec, -1
    """)


def l_cs_final(a):
    a.c("column sums: final reduction")
    a(f"""
    v_and_b32 v8, 63, v0
    v_lshlrev_b32 v9, 2, v8
    v_add_u32 v9, {L_CSP}, v9
    ds_read_b32 v10, v9
    ds_read_b32 v11, v9 offset:256
    ds_read_b32 v12, v9 offset:512
    ds_read_b32 v13, v9 offset:768
    s_waitcnt lgkmcnt(0)
    v_add_f32 v10, v10, v11
    v_add_f32 v12, v12, v13
    v_add_f32 v10, v10, v12
    v_mov_b32 v11, v10
    s_nop 1
    v_permlane32_swap_b32 v10, v11
    s_nop 1
    v_add_f32 v10, v10, v11
    v_mov_b32 v11, v10
    s_nop 1
    v_permlane16_swap_b32 v10, v11
    s_nop 1
    v_add_f32 v10, v10, v11
    s_lshl_b32 s6, s2, 6
    s_add_u32 s6, s6, {WS_CS}
    s_cmp_lt_u32 s2, 224
    s_cselect_b32 s6, s6, {WS_SIZE}
    v_lshlrev_b32 v9, 2, v8
    s_mov_b64 exec, 0xffff
    buffer_store_dword v10, v9, s[{SRD_WS}:{SRD_WS+3}], s6 offen sc1
    s_mov_b64 exec, -1
    """)
```

```python
from common import *

F_EPOCH = WS_FLAG
F1, F2, F3 = WS_FLAG + 0x1000, WS_FLAG + 0x2000, WS_FLAG + 0x3000
sTAG = 74
SPIN_LIMIT = 1 << 18


def tag_load(a):
    a(f"s_add_u32 s6, s{sWS}, {F_EPOCH}")
    a(f"s_addc_u32 s7, s{sWS+1}, 0")
    a(f"s_load_dword s{sTAG}, s[6:7], 0")


def tag_make(a):
    a(f"s_mul_i32 s{sTAG}, s{sTAG}, 0x9E3779B1")
    a(f"s_add_u32 s{sTAG}, s{sTAG}, 0x7F4A7C15")
    a(f"s_not_b32 s{sTAG+1}, s{sTAG}")


def post(a, base, idx_sgpr, vt):
    a(f"""
    v_mov_b32 v{vt}, s{sTAG}
    v_mov_b32 v{vt+1}, s{sTAG+1}
    v_mov_b32 v{vt+2}, 0
    s_lshl_b32 s6, s{idx_sgpr}, 4
    s_add_u32 s6, s6, {base}
    s_mov_b64 exec, 1
    buffer_store_dwordx2 v[{vt}:{vt+1}], v{vt+2}, s[{SRD_WS}:{SRD_WS+3}], s6 offen sc1
    s_mov_b64 exec, -1
    """)


def post_epoch(a, vt):
    a(f"""
    v_mov_b32 v{vt}, s{sTAG}
    v_mov_b32 v{vt+1}, {F_EPOCH}
    s_mov_b64 exec, 1
    buffer_store_dword v{vt}, v{vt+1}, s[{SRD_WS}:{SRD_WS+3}], 0 offen sc1
    s_mov_b64 exec, -1
    """)


def poll(a, base, n, vlane, vt, first_sgpr=None):
    lab = a.label("poll")
    k = max(1, n // 64)
    if n < 64:
        a(f"v_and_b32 v{vt+8}, {n-1}, v{vlane}")
        a(f"v_lshlrev_b32 v{vt+8}, 4, v{vt+8}")
    else:
        a(f"v_lshlrev_b32 v{vt+8}, 4, v{vlane}")
    if first_sgpr is None:
        a(f"s_mov_b32 s6, {base}")
    else:
        a(f"s_lshl_b32 s6, s{first_sgpr}, 4")
        a(f"s_add_u32 s6, s6, {base}")
    a(f"s_mov_b32 s7, {SPIN_LIMIT}")
    a(f"{lab}:")
    for j in range(k):
        a(f"buffer_load_dwordx2 v[{vt+2*j}:{vt+2*j+1}], v{vt+8}, s[{SRD_WS}:{SRD_WS+3}], s6 offen offset:{1024*j} sc1")
    a("s_waitcnt vmcnt(0)")
    a(f"v_cmp_eq_u64 vcc, s[{sTAG}:{sTAG+1}], v[{vt}:{vt+1}]")
    for j in range(1, k):
        a(f"v_cmp_eq_u64 s[8:9], s[{sTAG}:{sTAG+1}], v[{vt+2*j}:{vt+2*j+1}]")
        a("s_nop 1")
        a("s_and_b64 vcc, vcc, s[8:9]")
    a(f"""
    s_nop 1
    s_cmp_eq_u64 vcc, exec
    s_cbranch_scc1 {lab}_ok
    s_sub_u32 s7, s7, 1
    s_cmp_eq_u32 s7, 0
    s_cbranch_scc1 {lab}_ok
    s_sleep 1
    s_branch {lab}
    {lab}_ok:
    """)
```

```python
import sys
from common import *
from p0 import *
from conv import *
from sync import *

STAMP = False
sST = 96


def stamp(a, idx):
    if not STAMP:
        return
    a(f"""
    s_memrealtime s[{sST}:{sST+1}]
    s_lshl_b32 s98, s2, 3
    s_add_u32 s98, s98, s{sWAVE}
    s_lshl_b32 s98, s98, 7
    s_add_u32 s98, s98, {WS_FLAG + 0x10000 + 4 * idx}
    s_waitcnt lgkmcnt(0)
    v_mov_b32 v250, s{sST}
    v_mov_b32 v251, s98
    s_mov_b64 s[98:99], exec
    s_mov_b64 exec, 1
    buffer_store_dword v250, v251, s[{SRD_WS}:{SRD_WS+3}], 0 offen
    s_mov_b64 exec, s[98:99]
    """)


def only_wave(a, w, body):
    lab = a.label("ow")
    a(f"s_cmp_lg_u32 s{sWAVE}, {w}")
    a(f"s_cbranch_scc1 {lab}")
    body()
    a(f"{lab}:")


def build(stop=99):
    a = Asm()
    name = KNAME + "_kernel"
    a(f"""
    s_cmp_ge_u32 s2, 256
    s_cbranch_scc1 L_end
    s_load_dwordx16 s[16:31], s[0:1], 0
    s_load_dwordx8 s[32:39], s[0:1], 64
    s_load_dwordx2 s[40:41], s[0:1], 96
    v_lshrrev_b32 v1, 6, v0
    s_mov_b32 s{sMASK}, 0xffff0000
    v_readfirstlane_b32 s{sWAVE}, v1
    s_mov_b32 s{sSELLO}, 0x05040100
    s_mov_b32 s{sSELHI}, 0x07060302
    s_waitcnt lgkmcnt(0)
    """)
    a.srd(SRD_WS, sWS, WS_SIZE)
    tag_load(a)
    a(f"s_cmp_ge_u32 s{sWAVE}, 4")
    a("s_cbranch_scc1 L_roleM")

    a.c("================ L waves")
    l_tile_issue(a)
    a("s_waitcnt lgkmcnt(0)")
    tag_make(a)
    l_tile_compute(a)
    a("s_barrier")
    l_tile_store(a)
    a("s_barrier")
    a("v_and_b32 v1, 63, v0")
    if stop >= 2:
        import gemm1
        gemm1.l_setup(a)
        gemm1.l_prefill_w(a)
    if stop >= 3:
        import gemm2
        gemm2.l_setup(a)
    a("s_barrier")
    only_wave(a, 1, lambda: l_cs_final(a))

    def st():
        poll(a, F1, 256, 1, 8)
        stats_dma(a)
    only_wave(a, 0, st)
    a("s_waitcnt vmcnt(0)")
    a("s_barrier")
    a("s_barrier")
    only_wave(a, 0, lambda: post(a, F2, 2, 8))
    if stop >= 2:
        def p2():
            poll(a, F2, 256, 1, 8)
            lab = a.label("ep")
            a("s_cmp_lg_u32 s2, 0")
            a(f"s_cbranch_scc1 {lab}")
            post_epoch(a, 8)
            a(f"{lab}:")
        only_wave(a, 0, p2)
        a("s_barrier")
        gemm1.l_main(a)
    if stop == 2:
        a("s_barrier")
        gemm1.l_store_h(a)
    if stop >= 3:
        gemm2.l_main(a, only_wave)
    a("s_branch L_end")

    a("L_roleM:")
    a.c("================ M waves")
    a(f"""
    s_sub_u32 s4, s{sWAVE}, 4
    v_and_b32 v1, 63, v0
    """)
    m_stats_issue(a)
    m_conv_issue(a)
    m_cs_issue(a)
    a("s_barrier")
    a("s_waitcnt lgkmcnt(0)")
    tag_make(a)
    m_stats_finish(a, 63)
    a("s_waitcnt vmcnt(0)")
    a("s_barrier")

    def g1():
        post(a, F1, 2, 16)
    only_wave(a, 4, g1)
    m_conv_align(a)
    m_cs_partial(a)

    def g2():
        a("s_and_b32 s10, s2, 0xe0")
        poll(a, F1, 32, 1, 16, first_sgpr=10)
        kvr_dma(a)
        a("s_waitcnt vmcnt(0)")
    only_wave(a, 4, g2)
    a("s_waitcnt lgkmcnt(0)")
    a("s_barrier")
    a("s_setprio 1")
    m_conv_main(a)
    m_conv_exchange_write(a)
    a("s_barrier")
    m_conv_epilogue(a)
    a("s_barrier")
    if stop >= 2:
        gemm1.m_setup(a)
        a("s_barrier")
        gemm1.m_main(a)
    if stop == 2:
        a("s_barrier")
    if stop >= 3:
        gemm2.m_main(a, only_wave)
    a("L_end:")
    a("s_endpgm")

    head = open("cdna_kernels/" + KNAME + ".s.ref").read().split("; Override launch")[0]
    txt = head + f"; @launch grid=(256,1,1) block=(512,1,1) lds={LDS_BYTES}\n"
    txt += f""".amdgcn_target "amdgcn-amd-amdhsa--gfx950"
.text
.globl {name}
.p2align 8
.type {name},@function
{name}:
""" + a.text() + f""".section .rodata,"a"
.p2align 6
.amdhsa_kernel {name}
  .amdhsa_next_free_vgpr 256
  .amdhsa_next_free_sgpr 102
  .amdhsa_accum_offset 256
  .amdhsa_group_segment_fixed_size 0
  .amdhsa_kernarg_size 104
  .amdhsa_user_sgpr_count 2
  .amdhsa_user_sgpr_kernarg_segment_ptr 1
  .amdhsa_system_sgpr_workgroup_id_x 1
.end_amdhsa_kernel
"""
    return txt


if __name__ == "__main__":
    stop = int(sys.argv[1]) if len(sys.argv) > 1 else 99
    out = sys.argv[2] if len(sys.argv) > 2 else "cdna_kernels/" + KNAME + ".s"
    open(out, "w").write(build(stop))
```

```python
KNAME = "sequential_preLN__ssm_conv_h3__glu_gated_swiglu__prompt"

S, D, F = 2048, 512, 1792
RS = 4352
WS_KVR = 0x000000
WS_XT = 0x240000
WS_HT = 0x480000
WS_H = 0x6C0000
WS_ST1 = 0xDC0000
WS_CS = 0xDD8000
WS_FLAG = 0xDC8000
WS_REC = 0xE10000
WS_G = 0x1000000
WS_SIZE = 0x1500000
WS_STAMP = 0xEA0000

LDS_BYTES = 163840

sX, sK, sV, sSH, sSK, sSD, sBX, sW1, sW3, sW2, sOUT, sDBG, sWS = range(16, 42, 2)
sWAVE = 3
sPI = 73
sLOC = 79
SRD_WS = 44


class Asm:
    def __init__(self):
        self.lines = []
        self.nlabel = 0

    def __call__(self, text=""):
        for ln in text.split("\n"):
            ln = ln.strip()
            if ln:
                self.lines.append(ln if ln.endswith(":") else "  " + ln)

    def label(self, stem):
        self.nlabel += 1
        return f"L_{stem}_{self.nlabel}"

    def c(self, text):
        self.lines.append("  ; " + text)

    def srd(self, r, ptr, size, off_sgpr=None, off_imm=None):
        if off_sgpr is not None:
            self(f"s_add_u32 s{r}, s{ptr}, s{off_sgpr}")
            self(f"s_addc_u32 s{r+1}, s{ptr+1}, 0")
        elif off_imm:
            self(f"s_add_u32 s{r}, s{ptr}, {off_imm}")
            self(f"s_addc_u32 s{r+1}, s{ptr+1}, 0")
        else:
            self(f"s_mov_b32 s{r}, s{ptr}")
            self(f"s_mov_b32 s{r+1}, s{ptr+1}")
        self(f"s_mov_b32 s{r+2}, {size}")
        self(f"s_mov_b32 s{r+3}, 0x00020000")

    def text(self):
        return "\n".join(self.lines) + "\n"


def vr(a, n):
    return f"v[{a}:{a+n-1}]" if n > 1 else f"v{a}"


def sr(a, n):
    return f"s[{a}:{a+n-1}]" if n > 1 else f"s{a}"


def interleave(main, fill, start=0, end=None):
    end = len(main) if end is None else end
    n = end - start
    out = []
    for i, m in enumerate(main):
        out.append(m)
        if start <= i < end:
            j = i - start
            out += fill[(len(fill) * j) // n:(len(fill) * (j + 1)) // n]
    return out


STAMP_REGS = [88, 89, 90, 91, 92, 93, 94, 95, 96, 97, 98, 99, 42, 43, 12, 13]


class Stamps:
    on = False
    cyc = False
    names = {}

    @classmethod
    def put(cls, a, role, name):
        if not cls.on:
            return
        import os
        only = os.environ.get("STAMPSET")
        if name not in ("start", "end") and (name.startswith("g:") != bool(only)):
            return
        lst = cls.names.setdefault(role, [])
        lst.append(name)
        a(("s_memtime" if (name.startswith("cyc") or cls.cyc) else "s_memrealtime") + " s[100:101]")
        a("s_waitcnt lgkmcnt(0)")
        a(f"s_mov_b32 s{STAMP_REGS[len(lst) - 1]}, s100")

    @classmethod
    def flush(cls, a, role):
        if not cls.on:
            return
        a("s_waitcnt vmcnt(0)")
        cls.put(a, role, "end")
        for i in range(len(cls.names[role])):
            a(f"v_writelane_b32 v0, s{STAMP_REGS[i]}, {i}")
        a(f"""
        v_mbcnt_lo_u32_b32 v1, -1, 0
        v_mbcnt_hi_u32_b32 v1, -1, v1
        v_lshlrev_b32 v1, 2, v1
        s_lshl_b32 s6, s2, 3
        s_add_u32 s6, s6, s{sWAVE}
        s_lshl_b32 s6, s6, 7
        s_add_u32 s6, s6, {WS_STAMP}
        s_mov_b64 exec, 0xffffffff
        buffer_store_dword v0, v1, s[{SRD_WS}:{SRD_WS+3}], s6 offen
        """)
```

```python
from common import *
from p0 import *
HPOL = os.environ.get('HPOL', 'sc1')

FA = 128
D4 = 96
ACC = 16
BS = (48, 80)
XR = 112
vAOFF, vSHIFT, vBADDR = 7, 8, 9
sCP, sCH, sHH, sDV, sHTO = 68, 69, 70, 71, 72


def fa(mu, rr):
    return FA + 4 * (8 * rr + mu)


def m_conv_issue(a):
    a.c("conv: ssm_k row -> LDS, plain and shifted by one element")
    a(f"""
    s_lshr_b32 s{sCP}, s4, 1
    s_lshl_b32 s6, s{sPI}, 1
    s_add_u32 s{sCH}, s6, s{sCP}         ; channel
    s_lshl_b32 s7, s{sPI}, 2
    s_load_dword s{sDV}, s[{sSD}:{sSD+1}], s7
    s_and_b32 s{sHH}, s4, 1              ; h
    """)
    a.srd(48, sSK, S * D * 2)
    a(f"""
    s_lshl_b32 s6, s{sCH}, 12
    s_lshl_b32 s7, s{sHH}, 1
    s_add_u32 s7, s7, s6
    s_mul_i32 s8, s4, 4160
    s_add_u32 s8, s8, {L_KC}
    s_add_u32 m0, s8, 32
    v_lshlrev_b32 v13, 4, v1
    v_mov_b32 v14, 0
    """)
    for j in range(4):
        a(f"buffer_load_dwordx4 v13, s[48:51], s7 offen offset:{1024*j} nt lds")
    a(f"""
    buffer_load_ushort v44, v14, s[48:51], s6 offen nt
    v_and_b32 v11, 15, v1                ; b / column
    v_lshrrev_b32 v12, 4, v1
    v_lshl_add_u32 v13, v12, 3, v11      ; b + 8 kg
    v_add_u32 v13, 1, v13                ; e + 16
    v_and_b32 v15, 1, v13
    v_mul_u32_u24 v15, 4160, v15
    v_and_b32 v13, -2, v13
    v_lshl_add_u32 v13, v13, 1, v15
    s_mul_i32 s6, s{sCP}, 8320
    s_lshl_b32 s7, s{sHH}, 8
    s_add_u32 s6, s6, s7
    s_add_u32 s6, s6, {L_KC}
    v_add_u32 v{vAOFF}, s6, v13
    v_lshlrev_b32 v45, 2, v1
    v_add_u32 v45, s8, v45
    """)
    a.c("B fragment base and zero pad")
    a(f"""
    s_mul_i32 s6, s{sCP}, 4608
    s_add_u32 s6, s6, {L_R}
    v_lshlrev_b32 v13, 4, v12
    v_lshlrev_b32 v14, 5, v11
    v_sub_u32 v13, v13, v14
    s_lshl_b32 s7, s{sHH}, 8
    s_add_u32 s7, s7, s6
    s_add_u32 s7, s7, 480
    v_add_u32 v{vBADDR}, s7, v13
    v_lshlrev_b32 v13, 3, v1
    v_add_u32 v13, s6, v13
    v_mov_b32 v14, 0
    v_mov_b32 v15, 0
    ds_write_b64 v13, v[14:15] offset:4096
    """)


def m_conv_pad(a):
    a(f"""
    v_lshlrev_b32 v44, 16, v44
    v_mul_lo_u32 v44, v44, s{sHH}
    v_cmp_eq_u32 vcc, 7, v1
    s_nop 1
    v_cndmask_b32 v44, 0, v44, vcc
    s_mov_b64 exec, 0xff
    ds_write_b32 v45, v44
    s_mov_b64 exec, -1
    """)


def m_conv_frags(a):
    a.c("conv: Toeplitz fragments from LDS")
    for k in range(1, 4):
        a(f"v_add_u32 v{D4+k}, {1024*k}, v{vAOFF}")
    for rr in range(4):
        for mu in range(8):
            ad = vAOFF if mu < 2 else D4 + mu // 2
            o = 128 * (mu & 1) + 16 * rr
            f = fa(mu, rr)
            a(f"ds_read2_b32 {vr(f,2)}, v{ad} offset0:{o} offset1:{o+1}")
            a(f"ds_read2_b32 {vr(f+2,2)}, v{ad} offset0:{o+2} offset1:{o+3}")


def kvr_dma(a):
    a.c("conv: kv rows -> LDS")
    a(f"""
    v_lshlrev_b32 v13, 4, v1
    s_mul_i32 s6, s{sPI}, {2 * RS}
    s_cmp_eq_u32 s{sLOC}, 1
    s_cselect_b32 s7, 0, {WS_G}
    s_add_u32 s6, s6, s7
    """)
    for ch in range(2):
        a(f"s_mov_b32 m0, {L_R + 4608 * ch}")
        a(f"s_add_u32 s7, s6, {WS_KVR + RS * ch}")
        for j in range(4):
            a(f"buffer_load_dwordx4 v13, s[{SRD_WS}:{SRD_WS+3}], s7 offen offset:{1024*j} {HPOL} lds")


def stats_dma(a):
    a.c("conv: LN1 stats -> LDS")
    a("v_lshlrev_b32 v13, 4, v1")
    for j in range(4):
        a(f"s_mov_b32 m0, {L_ST + 4096 * j}")
        a(f"s_mov_b32 s7, {WS_ST1 + 4096 * j}")
        for i in range(4):
            a(f"buffer_load_dwordx4 v13, s[{SRD_WS}:{SRD_WS+3}], s7 offen offset:{1024*i} sc1 lds")


def xrow_dma(a):
    a(f"""
    v_lshlrev_b32 v13, 4, v1
    s_mul_i32 s6, s{sPI}, {2 * RS}
    s_cmp_eq_u32 s{sLOC}, 1
    s_cselect_b32 s7, 0, {WS_G}
    s_add_u32 s6, s6, s7
    """)
    for ch in range(2):
        a(f"s_mov_b32 m0, {L_XR + 4096 * ch}")
        a(f"s_add_u32 s7, s6, {WS_XT + RS * ch}")
        for j in range(4):
            a(f"buffer_load_dwordx4 v13, s[{SRD_WS}:{SRD_WS+3}], s7 offen offset:{1024*j} {HPOL} lds")


def m_conv_main(a):
    a(f"""
    s_mul_i32 s6, s{sCH}, {RS}
    s_lshl_b32 s7, s{sHH}, 11
    s_add_u32 s6, s6, s7
    s_add_u32 s{sHTO}, s6, {WS_HT}
    v_lshlrev_b32 v5, 5, v11
    v_lshl_add_u32 v5, v12, 3, v5
    """)

    def reads(rr):
        return [f"ds_read_b128 {vr(BS[rr&1]+4*nu,4)}, v{vBADDR} offset:{512*(7-nu)+64*rr}" for nu in range(8)]

    a.c("conv: main loop")
    for ln in reads(0) + reads(1):
        a(ln)
    for rr in range(4):
        mf = []
        for nu in range(8):
            if rr == 0:
                mf.append(f"s_waitcnt lgkmcnt({15-nu})")
            for mu in range(8 - nu):
                i = mu + nu
                c = "0" if (rr == 0 and nu == 0) else vr(ACC + 4 * i, 4)
                mf.append(f"v_mfma_f32_16x16x32_bf16 {vr(ACC+4*i,4)}, {vr(fa(mu,rr),4)}, {vr(BS[rr&1]+4*nu,4)}, {c}")
        if rr > 0:
            a("s_waitcnt lgkmcnt(0)")
        nxt = reads(rr + 1) if rr in (1, 2) else []
        for ln in interleave(mf, nxt, 1, 25):
            a(ln)


def m_conv_exchange_write(a):
    a.c("conv: exchange partial sums with the partner wave")
    lab = a.label("cx")
    a(f"""
    s_lshl_b32 s6, s4, 12
    s_add_u32 s6, s6, {L_EX}
    v_lshlrev_b32 v13, 4, v1
    v_add_u32 v14, s6, v13
    s_xor_b32 s6, s4, 1
    s_lshl_b32 s6, s6, 12
    s_add_u32 s6, s6, {L_EX}
    v_add_u32 v15, s6, v13
    s_nop 7
    s_cmp_eq_u32 s{sHH}, 0
    s_cbranch_scc1 {lab}_h0
    """)
    for i in range(4):
        a(f"ds_write_b128 v14, {vr(ACC+4*i,4)} offset:{1024*i}")
    a("s_nop 1")
    for i in range(16):
        a(f"v_mov_b32 v{ACC+i}, v{ACC+16+i}")
    a(f"s_branch {lab}_done")
    a(f"{lab}_h0:")
    for i in range(4):
        a(f"ds_write_b128 v14, {vr(ACC+16+4*i,4)} offset:{1024*i}")
    a(f"{lab}_done:")
    a("s_waitcnt lgkmcnt(0)")


def m_conv_epilogue(a):
    a.c("conv: epilogue  h = x + (x - mean) * rstd * (y + kv * D)")
    P, KV, ST = 48, 64, 72
    a(f"""
    s_mul_i32 s6, s{sCP}, 4608
    s_lshl_b32 s7, s{sHH}, 11
    s_sub_u32 s6, s6, s7
    s_add_u32 s6, s6, {L_R + 4088 - 1536}
    v_sub_u32 v6, s6, v5
    s_lshl_b32 s7, s{sHH}, 13
    s_add_u32 s7, s7, {L_ST}
    v_lshlrev_b32 v4, 2, v5
    v_add_u32 v4, s7, v4
    """)
    a(f"s_lshl_b32 s7, s4, 11")
    a(f"s_add_u32 s7, s7, {L_XR}")
    a(f"v_add_u32 v3, s7, v5")
    for i in range(4):
        a(f"ds_read_b128 {vr(P+4*i,4)}, v15 offset:{1024*i}")
        a(f"ds_read_b64 {vr(KV+2*i,2)}, v6 offset:{512*(3-i)}")
        a(f"ds_read_b64 {vr(XR+2*i,2)}, v3 offset:{512*i}")
        a(f"ds_read_b128 {vr(ST+8*i,4)}, v4 offset:{2048*i}")
        a(f"ds_read_b128 {vr(ST+8*i+4,4)}, v4 offset:{2048*i+16}")
    a(f"""
    s_lshl_b32 s6, s{sDV}, 16
    s_and_b32 s7, s{sDV}, s{sMASK}
    s_cmp_eq_u32 s{sCP}, 0
    s_cselect_b32 s{sDV}, s6, s7
    v_and_b32 v2, 1, v12
    v_lshrrev_b32 v13, 1, v12
    v_lshlrev_b32 v2, 9, v2
    v_lshl_add_u32 v2, v13, 4, v2
    v_lshl_add_u32 v2, v11, 5, v2
    """)
    T = 104
    O = 120
    for i in range(4):
        a(f"s_waitcnt lgkmcnt({15 - 5*i})")
        acc = ACC + 4 * i
        a(f"v_pk_add_f32 {vr(acc,2)}, {vr(acc,2)}, {vr(P+4*i,2)}")
        a(f"v_pk_add_f32 {vr(acc+2,2)}, {vr(acc+2,2)}, {vr(P+4*i+2,2)}")
        k0, k1 = KV + 2 * i, KV + 2 * i + 1
        x0, x1 = XR + 2 * i, XR + 2 * i + 1
        a(f"v_and_b32 v{T}, s{sMASK}, v{k1}")
        a(f"v_lshlrev_b32 v{T+1}, 16, v{k1}")
        a(f"v_and_b32 v{T+2}, s{sMASK}, v{k0}")
        a(f"v_lshlrev_b32 v{T+3}, 16, v{k0}")
        a(f"v_lshlrev_b32 v{T+4}, 16, v{x0}")
        a(f"v_and_b32 v{T+5}, s{sMASK}, v{x0}")
        a(f"v_lshlrev_b32 v{T+6}, 16, v{x1}")
        a(f"v_and_b32 v{T+7}, s{sMASK}, v{x1}")
        for e in range(4):
            a(f"v_fmac_f32 v{acc+e}, s{sDV}, v{T+e}")
        for e in range(4):
            a(f"v_sub_f32 v{T+e}, v{T+4+e}, v{ST+8*i+2*e}")
        for e in range(4):
            a(f"v_mul_f32 v{T+e}, v{T+e}, v{ST+8*i+2*e+1}")
        for e in range(4):
            a(f"v_fmac_f32 v{T+4+e}, v{T+e}, v{acc+e}")
        a(f"v_cvt_pk_bf16_f32 v{O+2*i}, v{T+4}, v{T+5}")
        a(f"v_cvt_pk_bf16_f32 v{O+2*i+1}, v{T+6}, v{T+7}")
        if i & 1:
            o = O + 2 * (i - 1)
            a("s_nop 1")
            a(f"v_permlane16_swap_b32 v{o}, v{o+2}")
            a(f"v_permlane16_swap_b32 v{o+1}, v{o+3}")
            a(f"buffer_store_dwordx4 {vr(o,4)}, v2, s[{SRD_WS}:{SRD_WS+3}], s{sHTO} offen offset:{512*(i-1)} sc1")
```

```python
from common import *
from p0 import *
from sync import *

import os
ABL = os.environ.get('ABL', '')
NS = 7
WSLOT, HSLOT = 14336, 8192
L_COEF = LMISC + 4096
sRB, sFB, sGI = 76, 77, 78
sSG = 5
sEX56 = 80
sLW = 82
sM0W, sM0H = 83, 84


def tile_ids(a):
    a(f"""
    s_and_b32 s6, s2, 7
    s_lshr_b32 s7, s2, 3
    s_lshr_b32 s8, s6, 1
    s_lshl_b32 s8, s8, 2
    s_and_b32 s9, s7, 3
    s_add_u32 s{sRB}, s8, s9
    s_and_b32 s8, s6, 1
    s_lshl_b32 s8, s8, 3
    s_lshr_b32 s9, s7, 2
    s_add_u32 s{sFB}, s8, s9
    s_lshl_b32 s8, s{sRB}, 4
    s_add_u32 s{sGI}, s8, s{sFB}
    s_and_b32 s8, s{sRB}, 3
    s_lshl_b32 s8, s8, 2
    s_add_u32 s8, s8, s{sFB}
    s_and_b32 s{sSG}, s8, 15
    """)


vWO, vHO0, vHO1, vSO, vCW, vWO0, vWO1 = 2, 3, 4, 5, 6, 7, 93
vRDY, vONE = 94, 95
SUM1, SUM2 = 32, 40
RD = 48
UN = 64


def l_setup(a):
    a.c("GEMM1 loader setup")
    tile_ids(a)
    a.srd(48, sW1, D * F * 2)
    a.srd(52, sW3, D * F * 2)
    a(f"""
    s_mov_b32 s{sEX56}, -1
    s_mov_b32 s{sEX56+1}, 0x00ffffff
    v_mul_u32_u24 v8, 4682, v1
    v_lshrrev_b32 v8, 16, v8             ; lane / 14
    v_mul_u32_u24 v9, 14, v8
    v_sub_u32 v9, v1, v9                 ; lane % 14
    v_mul_u32_u24 v8, {F*2}, v8
    v_lshl_add_u32 v8, v9, 4, v8
    s_mul_i32 s6, s{sFB}, 224
    v_add_u32 v{vWO0}, s6, v8
    s_mul_i32 s7, s{sWAVE}, {8 * F * 2}
    s_add_u32 s6, s6, s7
    v_add_u32 v{vWO}, s6, v8
    v_add_u32 v{vWO1}, {4 * F * 2}, v{vWO}
    s_mul_i32 s{sM0W}, s{sWAVE}, 1792
    s_lshl_b32 s{sM0H}, s{sWAVE}, 11
    s_add_u32 s{sM0H}, s{sM0H}, {LH}
    v_lshrrev_b32 v8, 4, v1              ; row
    v_and_b32 v9, 15, v1
    v_lshlrev_b32 v10, 1, v8
    v_xor_b32 v9, v9, v10                ; c ^ 2 row
    v_xor_b32 v10, 8, v9
    v_mul_u32_u24 v11, {RS}, v8
    s_mul_i32 s6, s{sWAVE}, {8 * RS}
    s_lshl_b32 s7, s{sRB}, 8
    s_add_u32 s6, s6, s7
    s_add_u32 s6, s6, {WS_HT}
    v_add_u32 v11, s6, v11
    v_lshl_add_u32 v{vHO0}, v9, 4, v11
    v_lshl_add_u32 v{vHO1}, v10, 4, v11
    v_add_u32 v{vHO1}, {4 * RS}, v{vHO1}
    v_and_b32 v8, 31, v1
    s_lshl_b32 s6, s{sWAVE}, 5
    v_add_u32 v8, s6, v8
    v_lshlrev_b32 v{vCW}, 4, v8          ; 16 * row
    v_lshrrev_b32 v9, 5, v1
    v_lshl_add_u32 v{vSO}, v9, 14, v{vCW}
    v_add_u32 v{vCW}, {L_COEF}, v{vCW}
    """)


def stage_index(a, s):
    a(f"s_add_u32 s10, s{sSG}, {s}")
    a("s_and_b32 s10, s10, 15")


def w_dma(a, s, for_wave0=False, pace=None):
    slot = s % NS
    a(f"s_mov_b64 exec, s[{sEX56}:{sEX56+1}]")
    stage_index(a, s)
    a(f"s_mul_i32 s8, s10, {32 * F * 2}")
    a(f"s_add_u32 s9, s8, {4 * F * 2}")
    for m in range(2):
        for q in range(2):
            lds = LW + slot * WSLOT + 7168 * m + 896 * q
            a(f"s_mov_b32 m0, {lds}" if for_wave0 else f"s_add_u32 m0, s{sM0W}, {lds}")
            a("s_nop 0" if pace is None else f"s_waitcnt vmcnt({pace - 1})")
            a(f"buffer_load_dwordx4 v{vWO0 if for_wave0 else vWO}, s[{48+4*m}:{51+4*m}], s{8+q} offen{WNT} lds")
    a("s_mov_b64 exec, -1")


def stage_dma(a, s):
    slot = s % NS
    w = LW + slot * WSLOT
    a(f"""
    s_add_u32 s10, s{sSG}, {s}
    s_and_b32 s10, s10, 15
    s_add_u32 m0, s{sM0H}, {slot * HSLOT}
    s_mul_i32 s8, s10, {32 * RS}
    buffer_load_dwordx4 v{vHO0}, s[{SRD_WS}:{SRD_WS+3}], s8 offen sc1 lds
    s_add_u32 m0, s{sM0H}, {slot * HSLOT + 1024}
    s_mul_i32 s9, s10, {32 * F * 2}
    buffer_load_dwordx4 v{vHO1}, s[{SRD_WS}:{SRD_WS+3}], s8 offen sc1 lds
    s_add_u32 m0, s{sM0W}, {w}
    s_mov_b32 exec_hi, 0x00ffffff
    buffer_load_dwordx4 v{vWO}, s[48:51], s9 offen lds
    s_add_u32 m0, s{sM0W}, {w + 896}
    s_nop 0
    buffer_load_dwordx4 v{vWO1}, s[48:51], s9 offen lds
    s_add_u32 m0, s{sM0W}, {w + 7168}
    s_nop 0
    buffer_load_dwordx4 v{vWO}, s[52:55], s9 offen lds
    s_add_u32 m0, s{sM0W}, {w + 7168 + 896}
    s_nop 0
    buffer_load_dwordx4 v{vWO1}, s[52:55], s9 offen lds
    s_mov_b32 exec_hi, -1
    """)


def h_dma(a, s):
    slot = s % NS
    stage_index(a, s)
    a(f"s_add_u32 m0, s{sM0H}, {slot * HSLOT}")
    a(f"s_mul_i32 s8, s10, {32 * RS}")
    a(f"buffer_load_dwordx4 v{vHO0}, s[{SRD_WS}:{SRD_WS+3}], s8 offen sc1 lds")
    a(f"s_add_u32 m0, s{sM0H}, {slot * HSLOT + 1024}")
    a("s_nop 0")
    a(f"buffer_load_dwordx4 v{vHO1}, s[{SRD_WS}:{SRD_WS+3}], s8 offen sc1 lds")


NPRE = NS
PACE = int(os.environ.get('PACE', 5))


def l_prefill_w(a, only_wave):
    a.c("GEMM1: weight ring prefill")
    for s in range(NS):
        w_dma(a, s, pace=PACE)
        only_wave(a, 1 + s % 3, lambda: w_dma(a, s, for_wave0=True, pace=PACE))


REC = 32


def rec_loads(a):
    a(f"s_lshl_b32 s6, s{sRB}, 15")
    a(f"s_add_u32 s6, s6, {WS_REC}")
    for j in range(8):
        a(f"buffer_load_dwordx4 {vr(REC + 4*j, 4)}, v{vSO}, s[{SRD_WS}:{SRD_WS+3}], s6 offen offset:{2048 * (j & 1)} sc1")
        if j & 1 and j < 7:
            a("s_add_u32 s6, s6, 4096")


def rec_check(a):
    lab = a.label("rec")
    a(f"s_mov_b32 s7, {SPIN_LIMIT}")
    a(f"{lab}:")
    a(f"v_cmp_eq_u64 vcc, s[{sTAG}:{sTAG+1}], {vr(REC + 2, 2)}")
    for j in range(1, 8):
        a(f"v_cmp_eq_u64 s[{8 + 2*(j & 1)}:{9 + 2*(j & 1)}], s[{sTAG}:{sTAG+1}], {vr(REC + 4*j + 2, 2)}")
        if j > 1:
            a(f"s_and_b64 vcc, vcc, s[{8 + 2*((j-1) & 1)}:{9 + 2*((j-1) & 1)}]")
    a(f"""
    s_nop 1
    s_and_b64 vcc, vcc, s[10:11]
    s_cmp_eq_u64 vcc, exec
    s_cbranch_scc1 {lab}_ok
    s_sub_u32 s7, s7, 1
    s_cmp_eq_u32 s7, 0
    s_cbranch_scc1 {lab}_ok
    s_sleep 1
    """)
    rec_loads(a)
    a(f"""
    s_waitcnt vmcnt(0)
    s_branch {lab}
    {lab}_ok:
    """)


def rec_finish(a):
    for step in (4, 8, 16):
        for j in range(0, 32, 2 * step):
            a(f"v_add_f32 v{REC + j}, v{REC + j}, v{REC + j + step}")
            a(f"v_add_f32 v{REC + j + 1}, v{REC + j + 1}, v{REC + j + step + 1}")
    a(f"""
    v_mov_b32 v{REC + 4}, v{REC}
    v_mov_b32 v{REC + 5}, v{REC + 1}
    s_nop 1
    v_permlane32_swap_b32 v{REC}, v{REC + 4}
    v_permlane32_swap_b32 v{REC + 1}, v{REC + 5}
    s_nop 1
    v_add_f32 v{REC}, v{REC}, v{REC + 4}
    v_add_f32 v{REC + 1}, v{REC + 1}, v{REC + 5}
    v_mul_f32 v{REC + 8}, 0xbb000000, v{REC}            ; -mean
    v_mul_f32 v{REC + 1}, 0x3b000000, v{REC + 1}
    v_fma_f32 v{REC + 1}, -v{REC + 8}, v{REC + 8}, v{REC + 1}
    v_max_f32 v{REC + 1}, 0, v{REC + 1}
    v_add_f32 v{REC + 10}, 0x3727c5ac, v{REC + 1}
    v_rsq_f32 v{REC + 11}, v{REC + 10}
    s_nop 0
    v_mul_f32 v{REC + 9}, 0xbfb8aa3b, v{REC + 11}
    ds_write_b128 v{vCW}, {vr(REC + 8, 4)}
    s_waitcnt lgkmcnt(0)
    """)


L_CS = LMISC + 512


def cs_fetch(a):
    a(f"""
    v_cmp_lt_u32 vcc, 27, v1
    v_mov_b32 v9, {F * 4 - 448}
    s_mul_i32 s6, s{sFB}, 448
    v_cndmask_b32 v9, 0, v9, vcc
    v_lshl_add_u32 v8, v1, 4, v9
    s_add_u32 s6, s6, {WS_CS}
    """)
    for q in range(4):
        a(f"buffer_load_dwordx4 {vr(64 + 4*q, 4)}, v8, s[{SRD_WS}:{SRD_WS+3}], s6 offen sc1")
        if q < 3:
            a(f"s_add_u32 s6, s6, {2 * F * 4}")


def cs_collect(a):
    for e in range(4):
        a(f"v_add_f32 v{64+e}, v{64+e}, v{68+e}")
        a(f"v_add_f32 v{72+e}, v{72+e}, v{76+e}")
    a(f"v_lshlrev_b32 v8, 4, v1")
    a(f"v_add_u32 v8, {L_CS}, v8")
    for e in range(4):
        a(f"v_add_f32 v{64+e}, v{64+e}, v{72+e}")
    a("ds_write_b128 v8, v[64:67]")
    a("s_waitcnt lgkmcnt(0)")


def l_main(a, only_wave):
    a.c("GEMM1 loader loop")
    import gemm2
    issued = []

    def stage(s):
        if s >= NPRE:
            stage_dma(a, s)
        else:
            h_dma(a, s)
        issued.append((s, 2 if s < NPRE else 6))

    def wait_for(stage):
        n = 0
        for s, k in reversed(issued):
            if s <= stage:
                break
            n += k
        a(f"s_waitcnt vmcnt({n})")

    for s in range(4):
        stage(s)
    wait_for(1)
    Stamps.put(a, "L", "g:a0")
    a("s_barrier")
    for s in range(4, NS):
        stage(s)
    wait_for(3)
    Stamps.put(a, "L", "g:a1")
    a("s_barrier")
    for n in range(6):
        if n == 0:
            only_wave(a, 2, lambda: cs_fetch(a))
        for s in (2 * n + 7, 2 * n + 8):
            if s < 16:
                stage(s)
        if n == 4:
            rec_loads(a)
            issued.append((15.5, 8))
            issued.append((16, gemm2.l_round1(a, 0)))
        if n == 5:
            wait_for(15.5)
            rec_check(a)
            issued.append((17, gemm2.l_round1(a, 1)))
        else:
            wait_for(2 * n + 5)
        Stamps.put(a, "L", f"g:a{n+2}")
        a("s_barrier")
    gemm2.l_round1(a, 2)
    rec_finish(a)
    only_wave(a, 2, lambda: cs_collect(a))
    Stamps.put(a, "L", "g:a8")
    a("s_barrier")


ACC = 16
SET = (128, 176)
CSR = 224
vWA0, vWA1, vW30, vW31 = 2, 3, 4, 5
vH = 6
vSO_, vCA, vC3, vCO = 10, 11, 12, 13
sU0, sU1, sU3, sRO = 83, 84, 85, 12
vRO = 14
PS = 224


def acc(p, gu, sl):
    u = (2 * p + gu) * 4 + sl if p < 3 else 24 + 2 * gu + sl
    return ACC + 4 * u


def m_setup(a):
    a.c("GEMM1 matrix-wave setup")
    tile_ids(a)
    a.srd(56, sW2, D * F * 2)
    a(f"""
    s_and_b32 s6, s4, 1                  ; wt
    s_lshr_b32 s7, s4, 1                 ; wf
    v_lshrrev_b32 v14, 2, v1             ; row 0..15
    v_and_b32 v15, 3, v1
    v_lshlrev_b32 v15, 3, v15
    v_mul_u32_u24 v16, 224, v14
    v_add_u32 v16, v16, v15
    s_lshl_b32 s8, s7, 7
    v_add_u32 v{vWA0}, s8, v16
    v_add_u32 v{vWA1}, {4 * WSLOT}, v{vWA0}
    v_add_u32 v{vW30}, 96, v16
    v_add_u32 v{vW31}, {4 * WSLOT + 96}, v16
    v_lshl_add_u32 v16, v14, 8, v15
    v_add_u32 v16, {LH}, v16
    v_and_b32 v17, 7, v14
    s_lshl_b32 s8, s6, 2
    s_lshl_b32 s9, s7, 1
    """)
    for sl in range(4):
        a(f"""
        s_xor_b32 s10, s9, {sl}
        s_add_u32 s10, s10, s8
        v_xor_b32 v18, s10, v17
        v_lshl_add_u32 v{vH + sl}, v18, 5, v16
        """)
    a(f"""
    v_and_b32 v14, 15, v1
    v_lshrrev_b32 v15, 4, v1
    s_add_u32 s10, s8, s9
    s_lshl_b32 s10, s10, 4
    v_add_u32 v16, s10, v14
    v_lshlrev_b32 v{vCO}, 4, v16
    v_add_u32 v{vCO}, {L_COEF}, v{vCO}
    v_lshlrev_b32 v{vSO_}, 4, v1
    s_mul_i32 s10, s{sGI}, 28672
    s_add_u32 s10, s10, {WS_H}
    s_lshl_b32 s11, s6, 1
    s_add_u32 s12, s11, s7
    s_mul_i32 s12, s12, 7168
    s_add_u32 s12, s12, s10
    s_add_u32 s{sU3}, s12, 3072
    s_lshl_b32 s13, s7, 12
    s_add_u32 s{sU0}, s12, s13
    s_xor_b32 s12, s7, 1
    s_add_u32 s12, s12, s11
    s_mul_i32 s12, s12, 7168
    s_add_u32 s12, s12, s10
    s_add_u32 s{sU1}, s12, s13
    s_xor_b32 s10, s9, 2
    s_add_u32 s10, s10, s8
    v_lshrrev_b32 v17, 5, v1
    v_add_u32 v17, s10, v17
    v_lshl_add_u32 v17, v17, 4, v14
    v_lshlrev_b32 v{vRO}, 4, v17
    s_lshl_b32 s10, s{sRB}, 4
    s_add_u32 s10, s10, s{sSG}
    s_lshl_b32 s10, s10, 11
    s_add_u32 s{sRO}, s10, {WS_REC}
    v_mov_b32 v{PS + 2}, s{sTAG}
    v_mov_b32 v{PS + 3}, s{sTAG + 1}
    s_and_b32 s10, s{sRB}, 3
    s_lshl_b32 s10, s10, 2
    s_add_u32 s10, s10, s4
    s_lshl_b32 s10, s10, 14
    s_and_b32 s11, s{sFB}, 7
    s_lshl_b32 s11, s11, 7
    s_add_u32 s10, s10, s11
    s_add_u32 s10, s10, {640 * 1024}
    v_bfe_u32 v17, v1, 4, 1
    v_mul_u32_u24 v17, 896, v17
    v_and_b32 v18, 15, v1
    v_add_u32 v17, v17, v18
    v_lshlrev_b32 v17, 10, v17
    buffer_load_dword v{PS + 29}, v17, s[56:59], s10 offen{W2NT}
    s_mul_i32 s{sLW}, s7, -1024
    s_add_u32 s{sLW}, s{sLW}, 512
    v_lshlrev_b32 v{vC3}, 4, v15
    v_add_u32 v{vC3}, {L_CS}, v{vC3}
    s_lshl_b32 s11, s7, 8
    v_add_u32 v{vCA}, s11, v{vC3}
    """)


def frag_reads(s):
    slot = s % NS
    b = SET[s & 1]
    wa, w3 = (vWA0, vW30) if slot < 4 else (vWA1, vW31)
    wo = (slot % 4) * WSLOT
    ho = slot * HSLOT

    def wf(p, gu):
        r = b + 4 * (2 * p + gu)
        ad, o = (wa, wo + 32 * p + 7168 * gu) if p < 3 else (w3, wo + 7168 * gu)
        return [f"ds_read_b64_tr_b16 {vr(r,2)}, v{ad} offset:{o}", f"ds_read_b64_tr_b16 {vr(r+2,2)}, v{ad} offset:{o + 3584}"]

    def hf(sl):
        r = b + 32 + 4 * sl
        return [f"ds_read_b64_tr_b16 {vr(r,2)}, v{vH + sl} offset:{ho}", f"ds_read_b64_tr_b16 {vr(r+2,2)}, v{vH + sl} offset:{ho + 4096}"]

    out = hf(0) + wf(0, 0) + hf(1) + hf(2) + hf(3) + wf(0, 1)
    for p in range(1, 4):
        out += wf(p, 0) + wf(p, 1)
    return out


def mfmas(s):
    b = SET[s & 1]
    out = []
    for p in range(4):
        for gu in range(2):
            for sl in range(4 if p < 3 else 2):
                d = vr(acc(p, gu, sl), 4)
                c = "0" if s == 0 else d
                out.append(f"v_mfma_f32_16x16x32_bf16 {d}, {vr(b + 4*(2*p+gu), 4)}, {vr(b + 32 + 4*sl, 4)}, {c}")
    return out


def partial_stats():
    part1, part2 = [], []
    for k in range(2):
        src = SET[0] + 32 + 4 * (2 + k)
        u = PS + 8 + 8 * k
        for d in range(4):
            part1.append(f"v_lshlrev_b32 v{u + 2*d}, 16, v{src + d}")
            part1.append(f"v_and_b32 v{u + 2*d + 1}, s{sMASK}, v{src + d}")
    s1 = (PS, PS + 4)
    s2 = (PS + 1, PS + 5)
    for e in range(8):
        for k in range(2):
            u = PS + 8 + 8 * k
            if e == 0:
                part2.append(f"v_mul_f32 v{s2[k]}, v{u}, v{u}")
            else:
                part2.append(f"v_add_f32 v{s1[k]}, v{u + e}, v{u if e == 1 else s1[k]}")
                part2.append(f"v_fmac_f32 v{s2[k]}, v{u + e}, v{u + e}")
    part3 = [f"v_permlane32_swap_b32 v{PS}, v{PS + 4}", f"v_permlane32_swap_b32 v{PS + 1}, v{PS + 5}",
             f"v_add_f32 v{PS}, v{PS}, v{PS + 4}", f"v_add_f32 v{PS + 1}, v{PS + 1}, v{PS + 5}",
             f"v_mov_b32 v{PS + 4}, v{PS}", f"v_mov_b32 v{PS + 5}, v{PS + 1}",
             f"v_permlane16_swap_b32 v{PS}, v{PS + 4}", f"v_permlane16_swap_b32 v{PS + 1}, v{PS + 5}",
             f"v_add_f32 v{PS}, v{PS}, v{PS + 4}", f"v_add_f32 v{PS + 1}, v{PS + 1}, v{PS + 5}",
             f"buffer_store_dwordx4 {vr(PS, 4)}, v{vRO}, s[{SRD_WS}:{SRD_WS+3}], s{sRO} offen sc1"]
    return part1, part2, part3


def place_fill(mf, fill, s):
    gaps = [[] for _ in mf]
    if s >= 5:
        for i, f in enumerate(fill):
            gaps[3 * i + 3].append(f)
    else:
        head, tail = (fill[:-6], fill[-6:]) if len(fill) > 6 else ([], fill)
        for i, f in enumerate(head):
            gaps[2 * i + 3].append(f)
        for i, f in enumerate(tail):
            gaps[25 + i // 2].append(f)
    return [[m] + g for m, g in zip(mf, gaps)]


def m_main(a):
    a.c("GEMM1 main loop")
    p1, p2, p3 = partial_stats()
    stat_fill = {0: p1, 1: p2[:8], 2: p2[8:16], 3: p2[16:24], 4: p2[24:] + p3[:2], 5: p3[2:10], 6: p3[10:]}
    a("s_barrier")
    Stamps.put(a, "M", "g:G0")
    Stamps.put(a, "M", "G0")
    Stamps.put(a, "M", "cyc0")
    for ln in frag_reads(0):
        a(ln)
    for s in range(16):
        a("s_waitcnt lgkmcnt(0)")
        if s & 1 and s < 15:
            Stamps.put(a, "M", f"g:a{(s+1)//2}")
            a("s_barrier")
        nxt = frag_reads(s + 1) if s < 15 else []
        mf = mfmas(s)
        fill = stat_fill.get(s)
        if fill:
            mf = ["\n".join(x) for x in place_fill(mf, fill, s)]
        for ln in interleave(mf, nxt, 0, 24):
            a(ln)
    Stamps.put(a, "M", "g:a8")
    a("s_barrier")
    Stamps.put(a, "M", "g:G8")
    Stamps.put(a, "M", "G8")
    Stamps.put(a, "M", "cyc1")
    m_epilogue(a)
    Stamps.put(a, "M", "g1_epi")


def m_epilogue(a):
    a.c("GEMM1 epilogue")
    CO = 128
    a(f"v_add_u32 v14, s{sLW}, v{vCO}")
    a(f"ds_read_b128 {vr(CO, 4)}, v{vCO}")
    a(f"ds_read_b128 {vr(CO + 4, 4)}, v{vCO} offset:256")
    a(f"ds_read_b128 {vr(CO + 8, 4)}, v14")
    a(f"ds_read_b128 {vr(CO + 12, 4)}, v14 offset:256")
    a("s_waitcnt vmcnt(0)")
    for p in range(4):
        for gu in range(2):
            ad, off = (vCA, 64 * p) if p < 3 else (vC3, 192)
            a(f"ds_read_b128 {vr(CSR + 8*p + 4*gu, 4)}, v{ad} offset:{off + 448 * gu}")
    a("s_waitcnt lgkmcnt(0)")
    lolo = "op_sel:[0,0,0] op_sel_hi:[1,0,1]"
    units = [(p, pi) for pi in range(2) for p in range(4) if not (p == 3 and pi == 1)]
    for n, (p, pi) in enumerate(units):
        T = 144 + 16 * (n & 1)
        O = T + 8
        st = []
        sls = (2 * pi, 2 * pi + 1)
        for k, sl in enumerate(sls):
            for hh in range(2):
                g, u = acc(p, 0, sl) + 2 * hh, acc(p, 1, sl) + 2 * hh
                cg, cu = CSR + 8 * p + 2 * hh, CSR + 8 * p + 4 + 2 * hh
                q = CO + 4 * sl
                a(f"v_pk_fma_f32 {vr(g,2)}, {vr(cg,2)}, {vr(q,2)}, {vr(g,2)} {lolo}")
                a(f"v_pk_fma_f32 {vr(u,2)}, {vr(cu,2)}, {vr(q,2)}, {vr(u,2)} {lolo}")
        for k, sl in enumerate(sls):
            for hh in range(2):
                g = acc(p, 0, sl) + 2 * hh
                q = CO + 4 * sl
                a(f"v_pk_mul_f32 {vr(T + 4*k + 2*hh, 2)}, {vr(g,2)}, {vr(q,2)} op_sel:[0,1] op_sel_hi:[1,1]")
        for e in range(8):
            a(f"v_exp_f32 v{T + e}, v{T + e}")
        for k, sl in enumerate(sls):
            for hh in range(2):
                g, u = acc(p, 0, sl) + 2 * hh, acc(p, 1, sl) + 2 * hh
                a(f"v_pk_mul_f32 {vr(g,2)}, {vr(g,2)}, {vr(u,2)}")
        for k, sl in enumerate(sls):
            for hh in range(2):
                t = vr(T + 4 * k + 2 * hh, 2)
                c = vr(CO + 4 * sl + 2, 2)
                a(f"v_pk_fma_f32 {t}, {t}, {c}, {c} op_sel:[0,0,0] op_sel_hi:[1,0,0]")
        for e in range(8):
            a(f"v_rcp_f32 v{T + e}, v{T + e}")
        a("s_nop 0")
        for k, sl in enumerate(sls):
            for hh in range(2):
                g = acc(p, 0, sl) + 2 * hh
                a(f"v_pk_mul_f32 {vr(g,2)}, {vr(g,2)}, {vr(T + 4*k + 2*hh, 2)}")
        for k, sl in enumerate(sls):
            for hh in range(2):
                g = acc(p, 0, sl) + 2 * hh
                a(f"v_cvt_pk_bf16_f32 v{O + 2*k + hh}, v{g}, v{g+1}")
        a("s_nop 1")
        a(f"v_permlane16_swap_b32 v{O}, v{O + 2}")
        a(f"v_permlane16_swap_b32 v{O + 1}, v{O + 3}")
        so, off = ((sU0, sU1)[pi], 1024 * p) if p < 3 else (sU3, 0)
        a(f"buffer_store_dwordx4 {vr(O, 4)}, v{vSO_}, s[{SRD_WS}:{SRD_WS+3}], s{so} offen offset:{off} sc1")
```

```python
from common import *
from p0 import *
from sync import *
import gemm1
from gemm1 import sRB, sFB, sGI

NLEFT = 6
RSLOT = 28672
LA = 4 * RSLOT
L_HR = LA
L_X2 = LA + 8192
R1_UNITS = list(range(6, 20))
R2_UNITS = list(range(20, 28))
R2_BASE = LA - 8 * 8192

vW2, vL16, vHR = 90, 91, 92
sW2M, sHG, sHM = 85, 86, 87


def l_setup(a):
    a.c("GEMM2 loader setup")
    a.srd(56, sW2, D * F * 2)
    a(f"""
    v_lshrrev_b32 v8, 3, v1
    v_and_b32 v9, 7, v1
    v_bfe_u32 v10, v1, 4, 1
    v_lshlrev_b32 v10, 1, v10
    v_xor_b32 v10, v9, v10
    s_and_b32 s6, s{sWAVE}, 1
    s_lshl_b32 s6, s6, 2
    v_xor_b32 v10, s6, v10
    v_lshlrev_b32 v11, 10, v8
    v_lshl_add_u32 v11, v10, 4, v11
    s_and_b32 s7, s{sFB}, 7              ; dc
    s_lshl_b32 s8, s7, 7
    s_lshl_b32 s9, s{sWAVE}, 13
    s_add_u32 s8, s8, s9
    v_add_u32 v{vW2}, s8, v11
    s_lshl_b32 s{sW2M}, s{sWAVE}, 10
    v_lshlrev_b32 v{vL16}, 4, v1
    v_bfe_u32 v10, v1, 4, 2
    v_lshlrev_b32 v10, 1, v10
    v_xor_b32 v10, v9, v10
    v_mul_u32_u24 v11, {RS}, v8
    v_lshl_add_u32 v11, v10, 4, v11
    s_lshl_b32 s8, s7, 6
    s_lshl_b32 s9, s{sWAVE}, 4
    s_add_u32 s8, s8, s9
    s_mul_i32 s8, s8, {RS}
    s_lshr_b32 s9, s{sFB}, 3             ; th
    s_lshl_b32 s10, s{sRB}, 8
    s_add_u32 s8, s8, s10
    s_lshl_b32 s10, s9, 7
    s_add_u32 s8, s8, s10
    s_add_u32 s8, s8, {WS_HT}
    v_add_u32 v{vHR}, s8, v11
    s_lshl_b32 s8, s{sRB}, 4
    s_lshr_b32 s10, s{sWAVE}, 1
    s_lshl_b32 s10, s10, 3
    s_add_u32 s8, s8, s10
    s_mul_i32 s8, s8, 28672
    s_mul_i32 s9, s9, 14336
    s_add_u32 s8, s8, s9
    s_and_b32 s10, s{sWAVE}, 1
    s_mul_i32 s10, s10, 7168
    s_add_u32 s8, s8, s10
    s_add_u32 s{sHG}, s8, {WS_H}
    s_mul_i32 s{sHM}, s{sWAVE}, 7168
    """)


def w2_dma(a, ks, lds):
    for kh in range(2):
        a(f"s_add_u32 m0, s{sW2M}, {lds + 4096 * kh}")
        a(f"s_mov_b32 s8, {(896 * kh + 32 * ks) * 1024}")
        a(f"buffer_load_dwordx4 v{vW2}, s[56:59], s8 offen{W2NT} lds")


def h_dma(a, s):
    slot = (s % 4) * RSLOT
    for part, cnt in ((0, 4), (4096, 3)):
        a(f"s_add_u32 m0, s{sHM}, {slot + part}")
        a(f"s_add_u32 s8, s{sHG}, {s * 28672 + part}")
        for j in range(cnt):
            a(f"buffer_load_dwordx4 v{vL16}, s[{SRD_WS}:{SRD_WS+3}], s8 offen offset:{1024*j} sc1 lds")


ROUND1 = [([4], []), ([5, 6, 7], [1, 2]), ([8, 9, 10, 11], [3, 4]), ([0, 1, 2, 3, 12, 13], [0])]


def l_round1(a, part):
    res, left = ROUND1[part]
    for i in res:
        w2_dma(a, R1_UNITS[i], 8192 * i)
    for ks in left:
        w2_dma(a, ks, LA + 8192 * ks)
    return 2 * (len(res) + len(left))


def l_main(a, only_wave):
    a.c("GEMM2 loader: rest of the w2 first round")
    l_round1(a, 3)
    a("s_barrier")
    a("s_waitcnt vmcnt(0)")
    Stamps.put(a, "L", "w2_r1")
    a("s_barrier")
    a("s_barrier")
    for i, ks in enumerate(R2_UNITS):
        w2_dma(a, ks, R2_BASE + 8192 * i)
    w2_dma(a, NLEFT - 1, LA + 8192 * (NLEFT - 1))
    a("s_waitcnt vmcnt(0)")
    Stamps.put(a, "L", "w2_r2")
    a("s_barrier")

    def pl():
        a(f"s_lshl_b32 s10, s{sRB}, 4")
        poll(a, F3, 16, 1, 8, first_sgpr=10)
    only_wave(a, 0, pl)
    Stamps.put(a, "L", "sync3")
    a("s_barrier")
    for s in range(4):
        h_dma(a, s)
    a("s_waitcnt vmcnt(21)")
    a("s_barrier")
    a("s_waitcnt vmcnt(14)")
    a("s_barrier")
    a("s_waitcnt vmcnt(7)")
    a("s_barrier")
    h_dma(a, 4)
    h_dma(a, 5)
    a(f"s_lshl_b32 s9, s{sWAVE}, 11")
    a(f"s_add_u32 m0, s9, {L_HR}")
    a("s_nop 0")
    a(f"buffer_load_dwordx4 v{vHR}, s[{SRD_WS}:{SRD_WS+3}], 0 offen sc1 lds")
    a(f"s_add_u32 m0, s9, {L_HR + 1024}")
    a(f"s_mov_b32 s8, {8 * RS}")
    a(f"buffer_load_dwordx4 v{vHR}, s[{SRD_WS}:{SRD_WS+3}], s8 offen sc1 lds")
    a("s_waitcnt vmcnt(16)")
    a("s_barrier")
    a("s_waitcnt vmcnt(9)")
    a("s_barrier")
    h_dma(a, 6)
    h_dma(a, 7)
    a("s_waitcnt vmcnt(16)")
    a("s_barrier")
    a("s_waitcnt vmcnt(7)")
    a("s_barrier")
    a("s_waitcnt vmcnt(0)")
    a("s_barrier")
    a("s_barrier")


W2R = 80
ACC = 8
HF = (40, 56)
W2T = 72
vB0, vB1, vSt0, vSt1, vWa, vWb = 0, 1, 2, 3, 4, 5
sKH, sDH = 86, 87


def w2reg(ks, db):
    return (W2R + 8 * (ks - NLEFT) if ks >= NLEFT else W2T) + 4 * db


def w2_reads(ks, off):
    out = []
    for db in range(2):
        r = w2reg(ks, db)
        out.append(f"ds_read_b64_tr_b16 {vr(r,2)}, v{vWa + db} offset:{off}")
        out.append(f"ds_read_b64_tr_b16 {vr(r+2,2)}, v{vWa + db} offset:{off + 512}")
    return out


def h_reads(j):
    c, r = divmod(j, 7)
    hi = c & 1
    if r < 3:
        ad, off = (vB0, vB1)[hi], 2048 * r
    elif r == 3:
        ad, off = (vSt0, vSt1)[hi], 0
    else:
        ad, off = (vB0, vB1)[hi], RSLOT + 1024 + 2048 * (r - 4)
    return [f"ds_read_b128 {vr(HF[j & 1] + 4*tb, 4)}, v{ad} offset:{off + 7168*(tb >> 1) + 256*(tb & 1)}" for tb in range(4)]


def lane_id(a, v):
    a(f"v_mbcnt_lo_u32_b32 v{v}, -1, 0")
    a(f"v_mbcnt_hi_u32_b32 v{v}, -1, v{v}")


def m_main(a, only_wave):
    a.c("GEMM2 matrix-wave setup")
    a(f"""
    s_and_b32 s{sKH}, s4, 1
    s_lshr_b32 s{sDH}, s4, 1
    v_mov_b32 v7, v1
    v_lshrrev_b32 v40, 4, v7             ; g
    v_and_b32 v41, 15, v7                ; i
    v_lshrrev_b32 v42, 2, v41
    v_lshl_add_u32 v42, v40, 3, v42      ; row = 8 g + (i >> 2)
    v_lshlrev_b32 v42, 7, v42
    v_and_b32 v43, 3, v7
    v_lshl_add_u32 v42, v43, 3, v42
    v_bfe_u32 v43, v7, 3, 2
    s_lshl_b32 s6, s{sDH}, 1
    v_xor_b32 v43, s6, v43
    s_lshl_b32 s7, s{sKH}, 12
    v_add_u32 v42, s7, v42
    v_lshl_add_u32 v{vWa}, v43, 5, v42
    v_xor_b32 v{vWb}, 32, v{vWa}
    v_lshlrev_b32 v42, 4, v41
    v_lshl_add_u32 v42, v40, 9, v42
    s_mul_i32 s7, s{sKH}, 14336
    v_add_u32 v{vB0}, s7, v42
    v_add_u32 v{vB1}, {2 * RSLOT}, v{vB0}
    v_mov_b32 v43, 6144
    v_mov_b32 v44, {RSLOT - 1024}
    v_cmp_gt_u32 vcc, 32, v7
    s_nop 1
    v_cndmask_b32 v43, v44, v43, vcc
    v_add_u32 v{vSt0}, v43, v{vB0}
    v_add_u32 v{vSt1}, v43, v{vB1}
    s_waitcnt vmcnt(0)
    """)
    Stamps.put(a, "M", "H_stored")
    a("s_barrier")
    only_wave(a, 4, lambda: post(a, F3, sGI, 40))
    a("s_barrier")
    a.c("GEMM2: w2 first round -> registers")
    for i, ks in enumerate(R1_UNITS):
        if i == 7:
            a(f"v_add_u32 v{vWa}, {7 * 8192}, v{vWa}")
            a(f"v_add_u32 v{vWb}, {7 * 8192}, v{vWb}")
        for ln in w2_reads(ks, 8192 * (i % 7)):
            a(ln)
    a("s_waitcnt lgkmcnt(0)")
    a("s_barrier")
    a(f"v_subrev_u32 v{vWa}, {7 * 8192 - R2_BASE}, v{vWa}")
    a(f"v_subrev_u32 v{vWb}, {7 * 8192 - R2_BASE}, v{vWb}")
    a("s_barrier")
    for i, ks in enumerate(R2_UNITS):
        for ln in w2_reads(ks, 8192 * i):
            a(ln)
    a(f"v_add_u32 v{vWa}, {LA - R2_BASE}, v{vWa}")
    a(f"v_add_u32 v{vWb}, {LA - R2_BASE}, v{vWb}")
    for ln in w2_reads(0, 0):
        a(ln)
    a("s_waitcnt lgkmcnt(0)")
    a("s_barrier")
    a.c("GEMM2 main loop")
    a("s_barrier")
    Stamps.put(a, "M", "K0")
    for ln in h_reads(0):
        a(ln)
    for j in range(28):
        a("s_waitcnt lgkmcnt(0)")
        if (j + 1) % 7 in (0, 3) and j < 27:
            a("s_barrier")
        mf = []
        for db in range(2):
            for tb in range(4):
                d = vr(ACC + 16 * db + 4 * tb, 4)
                c = "0" if j == 0 else d
                mf.append(f"v_mfma_f32_16x16x32_bf16 {d}, {vr(w2reg(j, db), 4)}, {vr(HF[j & 1] + 4*tb, 4)}, {c}")
        seq = interleave(mf, h_reads(j + 1) if j < 27 else [], 0, 4)
        if j + 1 < NLEFT:
            wr = w2_reads(j + 1, 8192 * (j + 1))
            k = seq.index(mf[3]) + 2
            seq = seq[:k] + wr[:2] + seq[k:] + wr[2:]
        for ln in seq:
            a(ln)
    Stamps.put(a, "M", "g2_loop")
    m_epilogue(a)


def m_epilogue(a):
    a.c("GEMM2: exchange the K halves, add the residual, store")
    lab = a.label("x2")
    a.srd(56, sOUT, S * D * 2)
    a(f"""
    v_lshlrev_b32 v0, 4, v7
    s_lshl_b32 s6, s4, 12
    s_add_u32 s6, s6, {L_X2}
    v_add_u32 v1, s6, v0
    s_xor_b32 s6, s4, 1
    s_lshl_b32 s6, s6, 12
    s_add_u32 s6, s6, {L_X2}
    v_add_u32 v2, s6, v0
    s_cmp_eq_u32 s{sKH}, 0
    s_cbranch_scc1 {lab}_k0
    """)
    for db in range(2):
        for t in range(2):
            a(f"ds_write_b128 v1, {vr(ACC + 16*db + 4*t, 4)} offset:{1024 * (2*db + t)}")
    a("s_nop 1")
    for db in range(2):
        for i in range(8):
            a(f"v_mov_b32 v{ACC + 16*db + i}, v{ACC + 16*db + 8 + i}")
    a(f"s_branch {lab}_done")
    a(f"{lab}_k0:")
    for db in range(2):
        for t in range(2):
            a(f"ds_write_b128 v1, {vr(ACC + 16*db + 8 + 4*t, 4)} offset:{1024 * (2*db + t)}")
    a(f"{lab}_done:")
    a(f"""
    v_lshrrev_b32 v3, 2, v7
    v_lshlrev_b32 v3, 7, v3
    v_and_b32 v4, 3, v7
    v_lshl_add_u32 v3, v4, 3, v3
    v_bfe_u32 v4, v7, 3, 2
    s_lshl_b32 s6, s{sKH}, 1
    v_xor_b32 v4, s6, v4
    s_lshl_b32 s7, s{sDH}, 12
    s_add_u32 s7, s7, {L_HR}
    v_add_u32 v3, s7, v3
    v_lshl_add_u32 v3, v4, 5, v3
    v_xor_b32 v4, 32, v3
    v_and_b32 v5, 15, v7
    v_lshlrev_b32 v5, 10, v5
    v_bfe_u32 v6, v7, 4, 1
    v_lshl_add_u32 v5, v6, 5, v5
    v_lshrrev_b32 v6, 5, v7
    v_lshl_add_u32 v5, v6, 4, v5
    s_lshl_b32 s6, s{sRB}, 7
    s_lshr_b32 s7, s{sFB}, 3
    s_lshl_b32 s7, s7, 6
    s_add_u32 s6, s6, s7
    s_lshl_b32 s7, s{sKH}, 5
    s_add_u32 s6, s6, s7
    s_lshl_b32 s6, s6, 10
    s_and_b32 s7, s{sFB}, 7
    s_lshl_b32 s7, s7, 7
    s_add_u32 s6, s6, s7
    s_lshl_b32 s7, s{sDH}, 6
    s_add_u32 s6, s6, s7
    s_add_u32 s7, s6, 16384
    s_waitcnt lgkmcnt(0)
    s_barrier
    """)
    P, HR, U, O = 40, 56, 64, 72
    for t in range(2):
        for db in range(2):
            a(f"ds_read_b128 {vr(P + 8*db + 4*t, 4)}, v2 offset:{1024 * (2*db + t)}")
            a(f"ds_read_b64_tr_b16 {vr(HR + 4*db + 2*t, 2)}, v{3 + t} offset:{2048 * db}")
    for t in range(2):
        a(f"s_waitcnt lgkmcnt({4 - 4*t})")
        for db in range(2):
            c, p, hr = ACC + 16 * db + 4 * t, P + 8 * db + 4 * t, HR + 4 * db + 2 * t
            u = U + 4 * db
            a(f"v_lshlrev_b32 v{u}, 16, v{hr}")
            a(f"v_and_b32 v{u+1}, s{sMASK}, v{hr}")
            a(f"v_lshlrev_b32 v{u+2}, 16, v{hr+1}")
            a(f"v_and_b32 v{u+3}, s{sMASK}, v{hr+1}")
            for hh in range(2):
                a(f"v_pk_add_f32 {vr(c+2*hh,2)}, {vr(c+2*hh,2)}, {vr(p+2*hh,2)}")
            for hh in range(2):
                a(f"v_pk_add_f32 {vr(c+2*hh,2)}, {vr(c+2*hh,2)}, {vr(u+2*hh,2)}")
            for hh in range(2):
                a(f"v_cvt_pk_bf16_f32 v{O + 4*t + 2*db + hh}, v{c+2*hh}, v{c+2*hh+1}")
        a("s_nop 1")
        a(f"v_permlane16_swap_b32 v{O + 4*t}, v{O + 4*t + 2}")
        a(f"v_permlane16_swap_b32 v{O + 4*t + 1}, v{O + 4*t + 3}")
        a(f"buffer_store_dwordx4 {vr(O + 4*t, 4)}, v5, s[56:59], s{6 + t} offen {os.environ.get('OPOL', '')}")
```

```python
from common import *
from sync import *
import os
WNT = ' nt' if 'w' in os.environ.get('NT', '') else ''
KNT = '' if os.environ.get('KPLAIN') else ' nt'
HNT = '' if os.environ.get('KPLAIN') or os.environ.get('HPLAIN') else ' nt'
CNT = ' nt' if 'c' in os.environ.get('NT', '') else ''
W2NT = ' nt' if '2' in os.environ.get('NT', '') else ''

LW = 0
LH = 100352
LMISC = 157696
L_T1 = LH
L_T2 = LH + 8192
L_CNT = LMISC + 4032
L_CSP = LMISC + 2560
L_R = LH + 17408
L_ST = L_R + 9216
L_EX = LH
L_XR = L_ST + 16384
L_KC = L_ST + 16384

sMASK = 64
sSELLO, sSELHI = 65, 66


def l_tile_issue(a):
    a.c("P0 tile loads")
    a.srd(48, sK, S * D * 2)
    a(f"""
    s_and_b32 s4, s2, 7                  ; g
    s_lshr_b32 s5, s2, 3                 ; tt
    s_lshl_b32 s6, s5, 16                ; t0*1024
    s_lshl_b32 s7, s4, 7                 ; 128 g
    s_add_u32 s6, s6, s7
    v_and_b32 v1, 7, v0                  ; cg
    v_lshrrev_b32 v2, 3, v0              ; rp
    v_lshlrev_b32 v3, 11, v2
    v_lshl_add_u32 v3, v1, 4, v3
    v_add_u32 v3, s6, v3
    buffer_load_dwordx4 v[20:23], v3, s[48:51], 0 offen{KNT}
    buffer_load_dwordx4 v[24:27], v3, s[48:51], 0 offen offset:1024{KNT}
    """)
    a.srd(52, sV, S * D * 2)
    a(f"""
    buffer_load_dwordx4 v[28:31], v3, s[52:55], 0 offen nt
    buffer_load_dwordx4 v[32:35], v3, s[52:55], 0 offen offset:1024 nt
    v_subrev_u32 v4, 3072, v3
    v_subrev_u32 v5, 2048, v3
    v_subrev_u32 v6, 1024, v3
    buffer_load_dwordx4 v[16:19], v6, s[48:51], 0 offen{HNT}
    buffer_load_dwordx4 v[12:15], v5, s[48:51], 0 offen{HNT}
    buffer_load_dwordx4 v[8:11], v4, s[48:51], 0 offen{HNT}
    """)
    a.srd(60, sSH, D * 8)
    a(f"""
    s_lshl_b32 s7, s4, 9
    v_lshlrev_b32 v7, 6, v1
    v_add_u32 v7, s7, v7
    buffer_load_dwordx4 v[44:47], v7, s[60:63], 0 offen
    buffer_load_dwordx4 v[48:51], v7, s[60:63], 0 offen offset:16
    buffer_load_dwordx4 v[52:55], v7, s[60:63], 0 offen offset:32
    buffer_load_dwordx4 v[56:59], v7, s[60:63], 0 offen offset:48
    """)


XLATE = bool(os.environ.get("XLATE"))


def l_x_issue(a):
    a("buffer_load_dwordx4 v[36:39], v3, s[56:59], 0 offen nt")
    a("buffer_load_dwordx4 v[40:43], v3, s[56:59], 0 offen offset:1024 nt")


def l_tile_setup(a):
    a.srd(56, sX, S * D * 2)
    if not XLATE:
        l_x_issue(a)
    a.c("LDS write bases and read-back / store offsets")
    a(f"""
    v_lshlrev_b32 v60, 2, v1             ; 4 cg
    v_sub_u32 v61, 31, v2
    v_xor_b32 v61, v61, v60
    v_xor_b32 v62, v2, v60
    v_lshlrev_b32 v63, 10, v1
    v_lshl_add_u32 v61, v61, 2, v63
    v_lshl_add_u32 v62, v62, 2, v63
    v_add_u32 v61, {L_T1}, v61
    v_add_u32 v62, {L_T2}, v62
    v_lshrrev_b32 v63, 6, v0
    v_xor_b32 v63, v63, v1               ; j ^ (d>>3)
    v_lshlrev_b32 v63, 4, v63
    v_lshl_add_u32 v63, v2, 7, v63       ; d*128 + 16*(j^(d>>3))
    v_add_u32 v63, {L_T1}, v63
    v_xor_b32 v64, 64, v63
    v_add_u32 v64, 4096, v64             ; rows d+32
    s_lshl_b32 s7, s4, 6
    v_add_u32 v65, s7, v2                ; channel 64g + d
    s_movk_i32 s8, {RS}
    v_mul_lo_u32 v65, v65, s8
    v_lshl_add_u32 v65, v1, 4, v65       ; + 16 j
    s_lshl_b32 s9, s5, 7                 ; t0*2
    s_sub_u32 s10, {WS_KVR + 3968}, s9
    s_add_u32 s11, s10, {32 * RS}
    s_add_u32 s12, s9, {WS_XT}
    s_add_u32 s13, s12, {32 * RS}
    """)


def l_tile_compute(a):
    a.c("P0 tile compute")
    a(f"s_waitcnt vmcnt({0 if XLATE else 2})")
    Stamps.put(a, "L", "tile_landed")
    if XLATE:
        a("s_barrier")
        l_x_issue(a)
    W, KU, VU, A_, B_, O = 68, 76, 86, 90, 92, 94
    for q in range(4):
        for half in range(2):
            d0, d1 = 44 + 4 * q + 2 * half, 45 + 4 * q + 2 * half
            a(f"v_lshlrev_b32 v{W + 0 + half}, 16, v{d0}")
            a(f"v_and_b32 v{W + 2 + half}, s{sMASK}, v{d0}")
            a(f"v_lshlrev_b32 v{W + 4 + half}, 16, v{d1}")
            a(f"v_and_b32 v{W + 6 + half}, s{sMASK}, v{d1}")
        for j in range(5):
            a(f"v_lshlrev_b32 v{KU + 2 * j}, 16, v{8 + 4 * j + q}")
            a(f"v_and_b32 v{KU + 2 * j + 1}, s{sMASK}, v{8 + 4 * j + q}")
        for j in range(2):
            a(f"v_lshlrev_b32 v{VU + 2 * j}, 16, v{28 + 4 * j + q}")
            a(f"v_and_b32 v{VU + 2 * j + 1}, s{sMASK}, v{28 + 4 * j + q}")
        k = lambda j: vr(KU + 2 * j, 2)
        w = lambda j: vr(W + 2 * j, 2)
        a(f"v_pk_mul_f32 {vr(A_,2)}, {w(3)}, {k(0)}")
        a(f"v_pk_mul_f32 {vr(B_,2)}, {w(3)}, {k(1)}")
        for tap in (2, 1, 0):
            a(f"v_pk_fma_f32 {vr(A_,2)}, {w(tap)}, {k(3 - tap)}, {vr(A_,2)}")
            a(f"v_pk_fma_f32 {vr(B_,2)}, {w(tap)}, {k(4 - tap)}, {vr(B_,2)}")
        a(f"v_pk_mul_f32 {vr(A_,2)}, {vr(A_,2)}, {vr(VU,2)}")
        a(f"v_pk_mul_f32 {vr(B_,2)}, {vr(B_,2)}, {vr(VU+2,2)}")
        o = O + 2 * q
        a(f"v_cvt_pk_bf16_f32 v{o}, v{B_}, v{A_}")
        a(f"v_cvt_pk_bf16_f32 v{o+1}, v{B_+1}, v{A_+1}")
        a(f"ds_write2_b32 v61, v{o}, v{o+1} offset0:{64*q} offset1:{64*q+32}")
    a("s_waitcnt lgkmcnt(0)")


def l_kv_store(a):
    a.c("P0: kv read-back and stores, x tile -> LDS")
    a(f"""
    ds_read_b128 v[8:11], v63
    ds_read_b128 v[12:15], v64
    s_waitcnt lgkmcnt(1)
    buffer_store_dwordx4 v[8:11], v65, s[{SRD_WS}:{SRD_WS+3}], s10 offen
    s_waitcnt lgkmcnt(0)
    buffer_store_dwordx4 v[12:15], v65, s[{SRD_WS}:{SRD_WS+3}], s11 offen
    s_waitcnt vmcnt(2)
    """)
    for q in range(4):
        o = 102 + 2 * q
        a(f"v_perm_b32 v{o}, v{40+q}, v{36+q}, s{sSELLO}")
        a(f"v_perm_b32 v{o+1}, v{40+q}, v{36+q}, s{sSELHI}")
        a(f"ds_write2_b32 v62, v{o}, v{o+1} offset0:{64*q} offset1:{64*q+32}")
    a("s_waitcnt vmcnt(0) lgkmcnt(0)")


def l_x_store(a):
    a(f"""
    ds_read_b128 v[16:19], v63 offset:8192
    ds_read_b128 v[20:23], v64 offset:8192
    s_waitcnt lgkmcnt(1)
    buffer_store_dwordx4 v[16:19], v65, s[{SRD_WS}:{SRD_WS+3}], s12 offen
    s_waitcnt lgkmcnt(0)
    buffer_store_dwordx4 v[20:23], v65, s[{SRD_WS}:{SRD_WS+3}], s13 offen
    """)


def l0_republish(a):
    lab = a.label("rp")
    a(f"""
    s_lshr_b32 s6, s2, 3
    s_lshl_b32 s6, s6, 7                 ; t0 * 2
    s_sub_u32 s7, {WS_G + WS_KVR + 3968}, s6
    s_add_u32 s6, s6, {WS_G + WS_XT}
    v_mov_b32 v24, v63
    s_mov_b32 s8, 0
    {lab}:
    s_lshl_b32 s9, s8, 4
    v_xor_b32 v25, s9, v24
    ds_read_b128 v[16:19], v25
    ds_read_b128 v[20:23], v25 offset:8192
    s_waitcnt lgkmcnt(0)
    buffer_store_dwordx4 v[16:19], v65, s[{SRD_WS}:{SRD_WS+3}], s7 offen sc1
    buffer_store_dwordx4 v[20:23], v65, s[{SRD_WS}:{SRD_WS+3}], s6 offen sc1
    s_waitcnt vmcnt(0)
    v_add_u32 v24, 1024, v24
    s_add_u32 s6, s6, {8 * RS}
    s_add_u32 s7, s7, {8 * RS}
    s_add_u32 s8, s8, 1
    s_cmp_lt_u32 s8, 8
    s_cbranch_scc1 {lab}
    """)


def m_stats_issue(a):
    a.c("LN1 stats: two rows per wave, 32 lanes per row")
    a.srd(56, sX, S * D * 2)
    a(f"""
    s_lshl_b32 s5, s2, 3
    s_lshl_b32 s6, s4, 1
    s_add_u32 s5, s5, s6
    v_lshrrev_b32 v2, 5, v1
    v_add_u32 v2, s5, v2                 ; row
    v_and_b32 v3, 31, v1
    v_lshlrev_b32 v3, 5, v3
    v_lshl_add_u32 v3, v2, 10, v3
    buffer_load_dwordx4 v[16:19], v3, s[56:59], 0 offen nt
    buffer_load_dwordx4 v[20:23], v3, s[56:59], 0 offen offset:16 nt
    v_lshlrev_b32 v4, 3, v2
    v_add_u32 v4, {WS_ST1}, v4
    """)


def dpp_add(a, reg, ctrl):
    a(f"v_add_f32_dpp v{reg}, v{reg}, v{reg} {ctrl}")


def m_stats_finish(a, vm):
    a(f"s_waitcnt vmcnt({vm})")
    for i in range(8):
        a(f"v_lshlrev_b32 v{24+2*i}, 16, v{16+i}")
        a(f"v_and_b32 v{25+2*i}, s{sMASK}, v{16+i}")
    a("v_pk_mul_f32 v[42:43], v[24:25], v[24:25]")
    a("v_pk_add_f32 v[40:41], v[24:25], v[26:27]")
    a("v_pk_fma_f32 v[42:43], v[26:27], v[26:27], v[42:43]")
    for i in range(2, 8):
        a(f"v_pk_add_f32 v[40:41], v[40:41], {vr(24+2*i,2)}")
        a(f"v_pk_fma_f32 v[42:43], {vr(24+2*i,2)}, {vr(24+2*i,2)}, v[42:43]")
    a("v_add_f32 v40, v40, v41")
    a("v_add_f32 v41, v42, v43")
    for ctrl in ("quad_perm:[1,0,3,2] row_mask:0xf bank_mask:0xf", "quad_perm:[2,3,0,1] row_mask:0xf bank_mask:0xf",
                 "row_half_mirror row_mask:0xf bank_mask:0xf", "row_mirror row_mask:0xf bank_mask:0xf",
                 "row_bcast:15 row_mask:0xa bank_mask:0xf"):
        a("s_nop 1")
        dpp_add(a, 40, ctrl)
        dpp_add(a, 41, ctrl)
    a(f"""
    v_mul_f32 v40, 0x3b000000, v40       ; mean = S1/512
    v_mul_f32 v41, 0x3b000000, v41
    v_fma_f32 v41, -v40, v40, v41        ; var
    v_max_f32 v41, 0, v41
    v_add_f32 v41, 0x3727c5ac, v41       ; + 1e-5
    v_rsq_f32 v41, v41
    s_mov_b32 s6, 0x00010000
    s_mov_b32 s7, 0x00010000
    s_mov_b64 exec, s[6:7]
    buffer_store_dwordx2 v[40:41], v4, s[{SRD_WS}:{SRD_WS+3}], 0 offen sc1
    s_mov_b64 exec, -1
    """)


sCSB = 67


def cs_block(a):
    a(f"""
    s_bfe_u32 s6, s2, 0x20001            ; (wg & 7) >> 1
    s_mul_i32 s6, s6, 28
    s_lshr_b32 s7, s2, 3
    s_add_u32 s6, s6, s7
    s_cmp_ge_u32 s6, 56
    s_cselect_b32 s8, 56, 0
    s_add_u32 s6, s6, s8
    s_and_b32 s8, s2, 1
    s_mul_i32 s8, s8, 56
    s_add_u32 s6, s6, s8
    s_cmp_lt_u32 s7, 28
    s_cselect_b32 s{sCSB}, s6, 224
    """)


def cs_issue(a):
    a.c("column-sum loads")
    cs_block(a)
    a(f"""
    s_lshr_b32 s8, s{sCSB}, 2
    s_cmp_lt_u32 s8, 28
    s_cselect_b32 s60, s{sW1}, s{sW3}
    s_cselect_b32 s61, s{sW1+1}, s{sW3+1}
    s_cselect_b32 s6, 0, 28
    s_sub_u32 s6, s8, s6
    s_cmp_lt_u32 s{sCSB}, 224
    s_cselect_b32 s62, {D * F * 2}, 0
    s_mov_b32 s63, 0x00020000
    s_lshl_b32 s6, s6, 7
    s_and_b32 s7, s{sCSB}, 3
    s_lshl_b32 s7, s7, 2
    s_add_u32 s7, s7, s4
    s_mul_i32 s7, s7, {32 * F * 2}
    s_add_u32 s6, s6, s7
    v_lshrrev_b32 v5, 3, v1
    v_mul_u32_u24 v5, {F * 2}, v5
    v_and_b32 v6, 7, v1
    v_lshl_add_u32 v5, v6, 4, v5
    s_add_u32 s7, s6, {8 * F * 2}
    s_add_u32 s8, s6, {16 * F * 2}
    s_add_u32 s9, s6, {24 * F * 2}
    buffer_load_dwordx4 v[48:51], v5, s[60:63], s6 offen{CNT}
    buffer_load_dwordx4 v[52:55], v5, s[60:63], s7 offen{CNT}
    buffer_load_dwordx4 v[56:59], v5, s[60:63], s8 offen{CNT}
    buffer_load_dwordx4 v[60:63], v5, s[60:63], s9 offen{CNT}
    """)


def cs_partial(a):
    a.c("column-sum partials")
    for q in range(4):
        a(f"v_lshlrev_b32 v{64+2*q}, 16, v{48+q}")
        a(f"v_and_b32 v{65+2*q}, s{sMASK}, v{48+q}")
    for i in range(1, 4):
        for q in range(4):
            a(f"v_lshlrev_b32 v{72+2*q}, 16, v{48+4*i+q}")
            a(f"v_and_b32 v{73+2*q}, s{sMASK}, v{48+4*i+q}")
        for q in range(4):
            a(f"v_pk_add_f32 {vr(64+2*q,2)}, {vr(64+2*q,2)}, {vr(72+2*q,2)}")
    a("s_nop 1")
    for c in range(8):
        dpp_add(a, 64 + c, "row_ror:8 row_mask:0xf bank_mask:0xf")
    a("s_nop 1")
    for e in range(4):
        a(f"v_permlane32_swap_b32 v{64+e}, v{68+e}")
    a("s_nop 1")
    for e in range(4):
        a(f"v_add_f32 v{64+e}, v{64+e}, v{68+e}")
    a("s_nop 1")
    for e in range(2):
        a(f"v_permlane16_swap_b32 v{64+e}, v{66+e}")
    a(f"""
    v_lshrrev_b32 v5, 4, v1
    v_lshlrev_b32 v5, 3, v5
    v_and_b32 v6, 7, v1
    v_lshl_add_u32 v5, v6, 5, v5
    s_lshl_b32 s6, s4, 8
    s_add_u32 s6, s6, {L_CSP}
    v_add_u32 v5, s6, v5
    v_add_f32 v64, v64, v66
    v_add_f32 v65, v65, v67
    ds_write_b64 v5, v[64:65]
    """)


def l_cs_final(a):
    a.c("column sums: final reduction")
    cs_block(a)
    a(f"""
    v_lshlrev_b32 v9, 2, v1
    v_add_u32 v8, {L_CSP}, v9
    """)
    for i in range(4):
        a(f"ds_read_b32 v{48+i}, v8 offset:{256*i}")
    a(f"""
    s_and_b32 s6, s{sCSB}, 3
    s_mul_i32 s6, s6, {2 * F * 4}
    s_lshr_b32 s7, s{sCSB}, 2
    s_lshl_b32 s7, s7, 8
    s_add_u32 s6, s6, s7
    s_add_u32 s6, s6, {WS_CS}
    s_cmp_lt_u32 s{sCSB}, 224
    s_cselect_b32 s6, s6, {WS_SIZE}
    s_waitcnt lgkmcnt(0)
    """)
    for step in (2, 1):
        for i in range(step):
            a(f"v_add_f32 v{48+i}, v{48+i}, v{48+i+step}")
    a(f"buffer_store_dword v48, v9, s[{SRD_WS}:{SRD_WS+3}], s6 offen sc1")


def m_touch_w2(a):
    a.c("w2 -> last-level cache")
    a.srd(52, sW2, D * F * 2)
    a(f"""
    s_mul_i32 s6, s2, 7168
    s_mul_i32 s7, s4, 1792
    s_add_u32 s6, s6, s7
    v_min_u32 v13, 13, v1
    v_lshlrev_b32 v13, 7, v13
    buffer_load_dword v10, v13, s[52:55], s6 offen
    """)


def m_x_store0(a):
    a(f"""
    v_and_b32 v13, 7, v1
    v_lshrrev_b32 v14, 3, v1
    v_lshlrev_b32 v13, 4, v13
    v_lshl_add_u32 v15, v14, 7, v13
    v_add_u32 v15, {L_T2}, v15
    ds_read_b128 v[80:83], v15
    v_xor_b32 v15, 64, v15
    ds_read_b128 v[84:87], v15 offset:4096
    s_and_b32 s6, s2, 7
    s_lshl_b32 s6, s6, 6
    v_add_u32 v14, s6, v14
    v_mul_u32_u24 v14, {RS}, v14
    v_add_u32 v14, v14, v13
    s_lshr_b32 s6, s2, 3
    s_lshl_b32 s6, s6, 7
    s_add_u32 s6, s6, {WS_XT}
    s_add_u32 s7, s6, {32 * RS}
    """)
    a(f"""
    s_waitcnt lgkmcnt(0)
    buffer_store_dwordx4 v[80:83], v14, s[{SRD_WS}:{SRD_WS+3}], s6 offen
    buffer_store_dwordx4 v[84:87], v14, s[{SRD_WS}:{SRD_WS+3}], s7 offen
    """)


def touch_code(a):
    lab = a.label("tc")
    a.c("code -> L2")
    a(f"""
    s_lshr_b32 s6, s2, 3
    s_cmp_ge_u32 s6, (L_end-L_begin+8191)/8192
    s_cbranch_scc1 {lab}
    s_getpc_b64 s[52:53]
    {lab}_pc:
    s_sub_u32 s52, s52, {lab}_pc-L_begin
    s_subb_u32 s53, s53, 0
    s_mov_b32 s54, L_end-L_begin
    s_mov_b32 s55, 0x00020000
    s_lshl_b32 s6, s6, 13
    v_lshlrev_b32 v13, 7, v1
    buffer_load_dword v10, v13, s[52:55], s6 offen
    {lab}:
    """)


def touch_pages(a, vlane_src):
    a.c("one word of every buffer")
    ptrs = [sK, sV, sSH, sX, sSK, sWS, sW1, sW3]
    a(f"v_mov_b32 v120, s{ptrs[0]}")
    a(f"v_mov_b32 v121, s{ptrs[0]+1}")
    for i, p in enumerate(ptrs[1:], 1):
        a(f"v_writelane_b32 v120, s{p}, {4 * i}")
        a(f"v_writelane_b32 v121, s{p+1}, {4 * i}")
    a("global_load_dword v122, v[120:121], off nt")
```

```python
from common import *
import os
LPOL = os.environ.get('LPOL', 'nt')

F_EPOCH = WS_FLAG
F2, F3, F1B = WS_FLAG + 0x2000, WS_FLAG + 0x3000, WS_FLAG + 0x4000
F1 = WS_FLAG - 0x8000 + 0x10000
F1X = 0xE00000
F1G = 0xE08000
sTAGL = 14
LOCAL_TRIES = 16
sTAG = 74
SPIN_LIMIT = 1 << 18


def tag_load(a):
    a(f"s_add_u32 s6, s{sWS}, {F_EPOCH}")
    a(f"s_addc_u32 s7, s{sWS+1}, 0")
    a(f"s_load_dword s{sTAG}, s[6:7], 0")


def tag_make(a):
    a(f"s_mul_i32 s{sTAG}, s{sTAG}, 0x9E3779B1")
    a(f"s_add_u32 s{sTAG}, s{sTAG}, 0x7F4A7C15")
    a(f"s_not_b32 s{sTAG+1}, s{sTAG}")
    a(f"s_getreg_b32 s{sTAGL+1}, hwreg(HW_REG_XCC_ID, 0, 4)")
    a(f"s_mov_b32 s{sTAGL}, s{sTAG}")
    a(f"s_add_u32 s{sTAGL+1}, s{sTAGL+1}, 1")
    import os
    if os.environ.get("FORCEG"):
        a("s_and_b32 s6, s2, 24")
        a(f"s_lshl_b32 s6, s6, 4")
        a(f"s_add_u32 s{sTAGL+1}, s{sTAGL+1}, s6")
    a(f"s_sub_u32 s{sTAGL+1}, s{sTAG+1}, s{sTAGL+1}")


def post(a, base, idx_sgpr, vt, shift=4, local=False):
    pol, tag = ("", sTAGL) if local else (" sc1", sTAG)
    a(f"""
    v_mov_b32 v{vt}, s{tag}
    v_mov_b32 v{vt+1}, s{tag+1}
    v_mov_b32 v{vt+2}, 0
    s_lshl_b32 s6, s{idx_sgpr}, {shift}
    s_add_u32 s6, s6, {base}
    s_mov_b64 exec, 1
    buffer_store_dwordx2 v[{vt}:{vt+1}], v{vt+2}, s[{SRD_WS}:{SRD_WS+3}], s6 offen{pol}
    s_mov_b64 exec, -1
    """)


def post_epoch(a, vt):
    a(f"""
    v_mov_b32 v{vt}, s{sTAG}
    v_mov_b32 v{vt+1}, {F_EPOCH}
    s_mov_b64 exec, 1
    buffer_store_dword v{vt}, v{vt+1}, s[{SRD_WS}:{SRD_WS+3}], 0 offen sc1
    s_mov_b64 exec, -1
    """)


def poll(a, base, n, vlane, vt, first_sgpr=None, shift=4, local=False):
    lab = a.label("poll")
    k = max(1, n // 64)
    if n < 64:
        a(f"v_and_b32 v{vt+8}, {n-1}, v{vlane}")
        a(f"v_lshlrev_b32 v{vt+8}, {shift}, v{vt+8}")
    else:
        a(f"v_lshlrev_b32 v{vt+8}, 4, v{vlane}")
    if first_sgpr is None:
        a(f"s_mov_b32 s6, {base}")
    else:
        a(f"s_lshl_b32 s6, s{first_sgpr}, {shift}")
        a(f"s_add_u32 s6, s6, {base}")
    a(f"s_mov_b32 s7, {SPIN_LIMIT}")
    a(f"{lab}:")
    for j in range(k):
        a(f"buffer_load_dwordx2 v[{vt+2*j}:{vt+2*j+1}], v{vt+8}, s[{SRD_WS}:{SRD_WS+3}], s6 offen offset:{1024*j} {LPOL if local else 'sc1'}")
    a("s_waitcnt vmcnt(0)")
    tag = sTAGL if local else sTAG
    a(f"v_cmp_eq_u64 vcc, s[{tag}:{tag+1}], v[{vt}:{vt+1}]")
    for j in range(1, k):
        a(f"v_cmp_eq_u64 s[8:9], s[{sTAG}:{sTAG+1}], v[{vt+2*j}:{vt+2*j+1}]")
        a("s_nop 1")
        a("s_and_b64 vcc, vcc, s[8:9]")
    a(f"""
    s_nop 1
    s_cmp_eq_u64 vcc, exec
    s_cbranch_scc1 {lab}_ok
    s_sub_u32 s7, s7, 1
    s_cmp_eq_u32 s7, 0
    s_cbranch_scc1 {lab}_ok
    s_sleep 1
    s_branch {lab}
    {lab}_ok:
    """)


def arrive_post(a, lds_word, n, base, idx_sgpr, vt, local=False):
    lab = a.label("arr")
    a(f"""
    v_mov_b32 v{vt}, {lds_word}
    v_mov_b32 v{vt+1}, 1
    s_mov_b64 exec, 1
    ds_add_rtn_u32 v{vt+2}, v{vt}, v{vt+1}
    s_mov_b64 exec, -1
    s_waitcnt lgkmcnt(0)
    v_readfirstlane_b32 s6, v{vt+2}
    s_nop 1
    s_cmp_lg_u32 s6, {n - 1}
    s_cbranch_scc1 {lab}
    """)
    post(a, base, idx_sgpr, vt, shift=7 if local else 4, local=local)
    a(f"{lab}:")


def arrive(a, lds_word, vt):
    a(f"""
    v_mov_b32 v{vt}, {lds_word}
    v_mov_b32 v{vt+1}, 1
    s_mov_b64 exec, 1
    ds_add_u32 v{vt}, v{vt+1}
    s_mov_b64 exec, -1
    """)


def await_count(a, lds_word, n, vt, sleep=0):
    lab = a.label("aw")
    a(f"""
    v_mov_b32 v{vt}, {lds_word}
    {lab}:
    ds_read_b32 v{vt+1}, v{vt}
    s_waitcnt lgkmcnt(0)
    v_readfirstlane_b32 s6, v{vt+1}
    s_nop 1
    s_cmp_ge_u32 s6, {n}
    s_cbranch_scc1 {lab}_ok
    """)
    if sleep:
        a(f"s_sleep {sleep}")
    a(f"s_branch {lab}")
    a(f"{lab}_ok:")


def by_locality(a, body):
    lab = a.label("loc")
    a(f"s_cmp_eq_u32 s{sLOC}, 1")
    a(f"s_cbranch_scc1 {lab}_l")
    body(" sc1")
    a(f"s_branch {lab}")
    a(f"{lab}_l:")
    body("")
    a(f"{lab}:")


def poll_local_or_global(a, vlane, vt, republish):
    lab = a.label("plg")
    a(f"""
    v_and_b32 v{vt+2}, 31, v{vlane}
    v_lshlrev_b32 v{vt+2}, 7, v{vt+2}
    v_lshrrev_b32 v{vt+3}, 5, v{vlane}
    v_mul_u32_u24 v{vt+3}, {F1G - F1}, v{vt+3}
    v_add_u32 v{vt+3}, v{vt+2}, v{vt+3}
    s_and_b32 s10, s{sPI}, 0xe0
    s_lshl_b32 s10, s10, 7
    s_add_u32 s10, s10, {F1}
    s_mov_b32 s11, 0
    {lab}:
    buffer_load_dwordx2 v[{vt}:{vt+1}], v{vt+3}, s[{SRD_WS}:{SRD_WS+3}], s10 offen {LPOL}
    s_waitcnt vmcnt(0)
    v_cmp_eq_u64 vcc, s[{sTAGL}:{sTAGL+1}], v[{vt}:{vt+1}]
    v_cmp_eq_u64 s[8:9], s[{sTAG}:{sTAG+1}], v[{vt}:{vt+1}]
    s_mov_b32 s{sLOC}, 1
    s_nop 0
    s_cmp_eq_u32 vcc_lo, -1
    s_cbranch_scc1 {lab}_ok
    s_mov_b32 s{sLOC}, 0
    s_cmp_eq_u32 s9, -1
    s_cbranch_scc1 {lab}_ok
    s_add_u32 s11, s11, 1
    s_cmp_eq_u32 s11, {SPIN_LIMIT}
    s_cbranch_scc1 {lab}_ok
    s_cmp_lg_u32 s11, {LOCAL_TRIES}
    s_cbranch_scc1 {lab}
    """)
    republish()
    a("s_waitcnt vmcnt(0)")
    post(a, F1G, sPI, vt, shift=7)
    a(f"s_branch {lab}")
    a(f"{lab}_ok:")


def read_locality(a, lds_word, vt):
    a(f"""
    v_mov_b32 v{vt}, {lds_word}
    ds_read_b32 v{vt}, v{vt}
    s_waitcnt lgkmcnt(0)
    v_readfirstlane_b32 s{sLOC}, v{vt}
    s_nop 1
    """)
```

```python
import sys
import os
from common import *
from p0 import *
from conv import *
from sync import *

def only_wave(a, w, body):
    lab = a.label("ow")
    a(f"s_cmp_lg_u32 s{sWAVE}, {w}")
    a(f"s_cbranch_scc1 {lab}")
    body()
    a(f"{lab}:")


def build(stop=99):
    a = Asm()
    name = KNAME + "_kernel"
    a(f"""
    L_begin:
    s_cmp_ge_u32 s2, 256
    s_cbranch_scc1 L_end
    s_load_dwordx16 s[16:31], s[0:1], 0
    s_load_dwordx8 s[32:39], s[0:1], 64
    s_load_dwordx2 s[40:41], s[0:1], 96
    v_lshrrev_b32 v1, 6, v0
    s_mov_b32 s{sMASK}, 0xffff0000
    v_readfirstlane_b32 s{sWAVE}, v1
    s_mov_b32 s{sSELLO}, 0x05040100
    s_mov_b32 s{sSELHI}, 0x07060302
    s_and_b32 s6, s2, 7
    s_lshl_b32 s6, s6, 5
    s_lshr_b32 s7, s2, 3
    s_add_u32 s{sPI}, s6, s7
    s_waitcnt lgkmcnt(0)
    """)
    a.srd(SRD_WS, sWS, WS_SIZE)
    tag_load(a)
    a(f"s_cmp_ge_u32 s{sWAVE}, 4")
    a("s_cbranch_scc1 L_roleM")

    a.c("================ L waves")
    Stamps.put(a, "L", "start")
    if os.environ.get("TP"):
        only_wave(a, 0, lambda: touch_pages(a, 0))
    l_tile_issue(a)
    l_tile_setup(a)
    Stamps.put(a, "L", "issued")
    a("s_barrier")
    a("s_waitcnt lgkmcnt(0)")
    tag_make(a)
    l_tile_compute(a)
    if XLATE:
        a("s_barrier")
    Stamps.put(a, "L", "tile_done")
    arrive(a, L_CNT + 20, 66)
    await_count(a, L_CNT + 20, 4, 66)
    Stamps.put(a, "L", "B1")
    l_kv_store(a)
    Stamps.put(a, "L", "tile_stored")
    arrive(a, L_CNT + 32, 66)
    await_count(a, L_CNT + 32, 4, 66)
    a("v_and_b32 v1, 63, v0")
    import gemm1
    import gemm2
    lab = a.label("s1")
    a(f"s_cmp_lg_u32 s{sWAVE}, 0")
    a(f"s_cbranch_scc1 {lab}_x")
    a.c("---- L wave 0: hand-offs")
    post(a, F1, sPI, 8, shift=7, local=True)
    poll_local_or_global(a, 1, 8, lambda: l0_republish(a))
    Stamps.put(a, "L", "sync1")
    kvr_dma(a)
    a("s_waitcnt vmcnt(0)")
    arrive(a, L_CNT + 16, 8)
    Stamps.put(a, "L", "kv_landed")
    a(f"s_cmp_eq_u32 s{sLOC}, 0")
    a(f"s_cbranch_scc1 {lab}_g")
    a(f"s_and_b32 s10, s{sPI}, 0xe0")
    poll(a, F1X, 32, 1, 8, first_sgpr=10, shift=7, local=True)
    a(f"{lab}_g:")
    await_count(a, L_CNT, 7, 8)
    xrow_dma(a)
    poll(a, F1B, 256, 1, 8)
    Stamps.put(a, "L", "sync1b")
    stats_dma(a)
    a("s_waitcnt vmcnt(0)")
    arrive(a, L_CNT + 4, 8)
    Stamps.put(a, "L", "st1")
    gemm1.l_setup(a)
    gemm2.l_setup(a)
    await_count(a, L_CNT + 28, 3, 8, sleep=2)
    Stamps.put(a, "L", "W_landed")
    await_count(a, L_CNT + 12, 5, 8, sleep=2)
    a(f"s_sleep {int(os.environ.get('BACKOFF', 32))}")
    poll(a, F2, 256, 1, 8)
    a("s_cmp_lg_u32 s2, 0")
    a(f"s_cbranch_scc1 {lab}")
    post_epoch(a, 8)
    a(f"s_branch {lab}")
    a(f"{lab}_x:")
    a.c("---- L waves 1..3: x tile, column sums, weight prefill")
    l_x_store(a)
    gemm1.l_setup(a)
    gemm2.l_setup(a)
    a("s_waitcnt vmcnt(0)")
    arrive_post(a, L_CNT, 7, F1X, sPI, 8, local=True)

    def csf():
        await_count(a, L_CNT + 8, 4, 8)
        l_cs_final(a)
        a("s_waitcnt vmcnt(0)")
        arrive_post(a, L_CNT + 12, 5, F2, 2, 8)
    if os.environ.get("LATEW"):
        await_count(a, L_CNT + 16, 1, 8, sleep=2)
    gemm1.l_prefill_w(a, only_wave)
    only_wave(a, 1, csf)
    a("s_waitcnt vmcnt(0)")
    arrive(a, L_CNT + 28, 8)
    a(f"{lab}:")
    if stop >= 2:
        Stamps.put(a, "L", "sync2")
        a("s_barrier")
        gemm1.l_main(a, only_wave)
    if stop >= 3:
        gemm2.l_main(a, only_wave)
    Stamps.flush(a, "L")
    a("s_branch L_end")

    a("L_roleM:")
    a.c("================ M waves")
    a(f"""
    s_sub_u32 s4, s{sWAVE}, 4
    v_and_b32 v1, 63, v0
    """)
    Stamps.put(a, "M", "start")
    if os.environ.get("CODE"):
        only_wave(a, 7, lambda: touch_code(a))
    if XLATE:
        a("s_barrier")
        a("s_barrier")
    m_stats_issue(a)
    m_conv_issue(a)
    a(f"v_mov_b32 v13, {L_CNT}")
    for o in range(0, 48, 8):
        a(f"ds_write_b64 v13, v[14:15] offset:{o}")
    a("s_waitcnt lgkmcnt(0)")
    a("s_barrier")
    cs_issue(a)
    early = bool(os.environ.get("EARLY2"))
    if early:
        m_touch_w2(a)
    tag_make(a)
    m_stats_finish(a, 10 if early else 9)
    a(f"s_waitcnt vmcnt({6 if early else 5})")
    m_conv_pad(a)
    a("s_waitcnt lgkmcnt(0)")
    Stamps.put(a, "M", "k_landed")
    arrive(a, L_CNT + 36, 16)
    await_count(a, L_CNT + 36, 4, 16)
    Stamps.put(a, "M", "B2")
    m_conv_frags(a)

    def x0():
        await_count(a, L_CNT + 32, 4, 16)
        m_x_store0(a)
    only_wave(a, 7, x0)
    a("s_waitcnt vmcnt(0) lgkmcnt(0)")
    arrive_post(a, L_CNT, 7, F1X, sPI, 16, local=True)
    arrive_post(a, L_CNT + 24, 4, F1B, 2, 16)
    cs_partial(a)
    a("s_waitcnt lgkmcnt(0)")
    arrive(a, L_CNT + 8, 16)
    Stamps.put(a, "M", "frags")
    await_count(a, L_CNT + 16, 1, 2)
    Stamps.put(a, "M", "B3")
    a(f"s_setprio {os.environ.get('PRIO', 1)}")
    m_conv_main(a)
    m_conv_exchange_write(a)
    arrive(a, L_CNT + 4, 2)
    Stamps.put(a, "M", "conv_mfma")
    await_count(a, L_CNT + 4, 5, 2)
    m_conv_epilogue(a)
    a("s_waitcnt vmcnt(0)")
    arrive_post(a, L_CNT + 12, 5, F2, 2, 2)
    if not early:
        m_touch_w2(a)
        a("s_waitcnt vmcnt(0)")
    Stamps.put(a, "M", "hT_stored")
    if stop >= 2:
        gemm1.m_setup(a)
        a("s_barrier")
        gemm1.m_main(a)
    if stop >= 3:
        gemm2.m_main(a, only_wave)
    Stamps.flush(a, "M")
    a("L_end:")
    a("s_endpgm")

    head = open("cdna_kernels/" + KNAME + ".s.ref").read().split("; Override launch")[0]
    txt = head + f"; @launch grid=(256,1,1) block=(512,1,1) lds={LDS_BYTES}\n"
    txt += f""".amdgcn_target "amdgcn-amd-amdhsa--gfx950"
.text
.globl {name}
.p2align 8
.type {name},@function
{name}:
""" + a.text() + f""".section .rodata,"a"
.p2align 6
.amdhsa_kernel {name}
  .amdhsa_next_free_vgpr 256
  .amdhsa_next_free_sgpr 102
  .amdhsa_accum_offset 256
  .amdhsa_group_segment_fixed_size 0
  .amdhsa_kernarg_size 104
  .amdhsa_user_sgpr_count 2
  .amdhsa_user_sgpr_kernarg_segment_ptr 1
  .amdhsa_system_sgpr_workgroup_id_x 1
.end_amdhsa_kernel
"""
    return txt


if __name__ == "__main__":
    if "--cyc" in sys.argv:
        sys.argv.remove("--cyc")
        Stamps.cyc = True
    if "--stamp" in sys.argv:
        sys.argv.remove("--stamp")
        Stamps.on = True
    stop = int(sys.argv[1]) if len(sys.argv) > 1 else 99
    out = sys.argv[2] if len(sys.argv) > 2 else "cdna_kernels/" + KNAME + ".s"
    open(out, "w").write(build(stop))
    if Stamps.on:
        import json
        json.dump(dict(Stamps.names, cyc=Stamps.cyc), open(out + ".json", "w"))
```

```python
import sys
import os
from common import *
from p0 import *
from conv import *
from sync import *

def only_wave(a, w, body):
    lab = a.label("ow")
    a(f"s_cmp_lg_u32 s{sWAVE}, {w}")
    a(f"s_cbranch_scc1 {lab}")
    body()
    a(f"{lab}:")


def build(stop=99):
    a = Asm()
    name = KNAME + "_kernel"
    a(f"""
    L_begin:
    s_cmp_ge_u32 s2, 256
    s_cbranch_scc1 L_end
    s_load_dwordx16 s[16:31], s[0:1], 0
    s_load_dwordx8 s[32:39], s[0:1], 64
    s_load_dwordx2 s[40:41], s[0:1], 96
    v_lshrrev_b32 v1, 6, v0
    s_mov_b32 s{sMASK}, 0xffff0000
    v_readfirstlane_b32 s{sWAVE}, v1
    s_mov_b32 s{sSELLO}, 0x05040100
    s_mov_b32 s{sSELHI}, 0x07060302
    s_and_b32 s6, s2, 7
    s_lshl_b32 s6, s6, 5
    s_lshr_b32 s7, s2, 3
    s_add_u32 s{sPI}, s6, s7
    s_waitcnt lgkmcnt(0)
    """)
    wsoff = int(os.environ.get("WSOFF", "0"), 0)
    if wsoff:
        a(f"s_add_u32 s{sWS}, s{sWS}, {wsoff}")
        a(f"s_addc_u32 s{sWS+1}, s{sWS+1}, 0")
    a.srd(SRD_WS, sWS, WS_SIZE)
    tag_load(a)
    a(f"s_cmp_ge_u32 s{sWAVE}, 4")
    a("s_cbranch_scc1 L_roleM")

    a.c("================ L waves")
    Stamps.put(a, "L", "start")
    if os.environ.get("TP"):
        only_wave(a, 0, lambda: touch_pages(a, 0))
    l_tile_issue(a)
    l_tile_setup(a)
    Stamps.put(a, "L", "issued")
    a("s_barrier")
    a("s_waitcnt lgkmcnt(0)")
    tag_make(a)
    l_tile_compute(a)
    if XLATE:
        a("s_barrier")
    Stamps.put(a, "L", "tile_done")
    arrive(a, L_CNT + 20, 66)
    await_count(a, L_CNT + 20, 4, 66)
    Stamps.put(a, "L", "B1")
    l_kv_store(a)
    Stamps.put(a, "L", "tile_stored")
    arrive(a, L_CNT + 32, 66)
    await_count(a, L_CNT + 32, 4, 66)
    a("v_and_b32 v1, 63, v0")
    import gemm1
    import gemm2
    lab = a.label("s1")
    a(f"s_cmp_lg_u32 s{sWAVE}, 0")
    a(f"s_cbranch_scc1 {lab}_x")
    a.c("---- L wave 0: hand-offs")
    post(a, F1, sPI, 8, shift=7, local=True)
    poll_local_or_global(a, 1, 8, lambda: l0_republish(a))
    Stamps.put(a, "L", "sync1")
    kvr_dma(a)
    a("s_waitcnt vmcnt(0)")
    arrive(a, L_CNT + 16, 8)
    Stamps.put(a, "L", "kv_landed")
    a(f"s_cmp_eq_u32 s{sLOC}, 0")
    a(f"s_cbranch_scc1 {lab}_g")
    a(f"s_and_b32 s10, s{sPI}, 0xe0")
    poll(a, F1X, 32, 1, 8, first_sgpr=10, shift=7, local=True)
    a(f"{lab}_g:")
    await_count(a, L_CNT, 7, 8)
    xrow_dma(a)
    poll(a, F1B, 256, 1, 8)
    Stamps.put(a, "L", "sync1b")
    stats_dma(a)
    a("s_waitcnt vmcnt(0)")
    arrive(a, L_CNT + 4, 8)
    Stamps.put(a, "L", "st1")
    gemm1.l_setup(a)
    gemm2.l_setup(a)
    await_count(a, L_CNT + 28, 3, 8, sleep=2)
    Stamps.put(a, "L", "W_landed")
    await_count(a, L_CNT + 12, 5, 8, sleep=2)
    a(f"s_sleep {int(os.environ.get('BACKOFF', 32))}")
    poll(a, F2, 256, 1, 8)
    a("s_cmp_lg_u32 s2, 0")
    a(f"s_cbranch_scc1 {lab}")
    post_epoch(a, 8)
    a(f"s_branch {lab}")
    a(f"{lab}_x:")
    a.c("---- L waves 1..3: x tile, column sums, weight prefill")
    l_x_store(a)
    gemm1.l_setup(a)
    gemm2.l_setup(a)
    a("s_waitcnt vmcnt(0)")
    arrive_post(a, L_CNT, 7, F1X, sPI, 8, local=True)

    def csf():
        await_count(a, L_CNT + 8, 4, 8)
        l_cs_final(a)
        a("s_waitcnt vmcnt(0)")
        arrive_post(a, L_CNT + 12, 5, F2, 2, 8)
    if os.environ.get("LATEW"):
        await_count(a, L_CNT + 16, 1, 8, sleep=2)
    gemm1.l_prefill_w(a, only_wave)
    only_wave(a, 1, csf)
    a("s_waitcnt vmcnt(0)")
    arrive(a, L_CNT + 28, 8)
    a(f"{lab}:")
    if stop >= 2:
        Stamps.put(a, "L", "sync2")
        a("s_barrier")
        gemm1.l_main(a, only_wave)
    if stop >= 3:
        gemm2.l_main(a, only_wave)
    Stamps.flush(a, "L")
    a("s_branch L_end")

    a("L_roleM:")
    a.c("================ M waves")
    a(f"""
    s_sub_u32 s4, s{sWAVE}, 4
    v_and_b32 v1, 63, v0
    """)
    Stamps.put(a, "M", "start")
    if os.environ.get("CODE"):
        only_wave(a, 7, lambda: touch_code(a))
    if XLATE:
        a("s_barrier")
        a("s_barrier")
    m_stats_issue(a)
    m_conv_issue(a)
    a(f"v_mov_b32 v13, {L_CNT}")
    for o in range(0, 48, 8):
        a(f"ds_write_b64 v13, v[14:15] offset:{o}")
    a("s_waitcnt lgkmcnt(0)")
    a("s_barrier")
    cs_issue(a)
    early = bool(os.environ.get("EARLY2"))
    if early:
        m_touch_w2(a)
    tag_make(a)
    m_stats_finish(a, 10 if early else 9)
    a(f"s_waitcnt vmcnt({6 if early else 5})")
    m_conv_pad(a)
    a("s_waitcnt lgkmcnt(0)")
    Stamps.put(a, "M", "k_landed")
    arrive(a, L_CNT + 36, 16)
    await_count(a, L_CNT + 36, 4, 16)
    Stamps.put(a, "M", "B2")
    m_conv_frags(a)

    def x0():
        await_count(a, L_CNT + 32, 4, 16)
        m_x_store0(a)
    only_wave(a, 7, x0)
    a("s_waitcnt vmcnt(0) lgkmcnt(0)")
    arrive_post(a, L_CNT, 7, F1X, sPI, 16, local=True)
    arrive_post(a, L_CNT + 24, 4, F1B, 2, 16)
    cs_partial(a)
    a("s_waitcnt lgkmcnt(0)")
    arrive(a, L_CNT + 8, 16)
    Stamps.put(a, "M", "frags")
    await_count(a, L_CNT + 16, 1, 2)
    Stamps.put(a, "M", "B3")
    a(f"s_setprio {os.environ.get('PRIO', 1)}")
    m_conv_main(a)
    m_conv_exchange_write(a)
    arrive(a, L_CNT + 4, 2)
    Stamps.put(a, "M", "conv_mfma")
    await_count(a, L_CNT + 4, 5, 2)
    m_conv_epilogue(a)
    a("s_waitcnt vmcnt(0)")
    arrive_post(a, L_CNT + 12, 5, F2, 2, 2)
    if not early:
        m_touch_w2(a)
        a("s_waitcnt vmcnt(0)")
    Stamps.put(a, "M", "hT_stored")
    if stop >= 2:
        gemm1.m_setup(a)
        a("s_barrier")
        gemm1.m_main(a)
    if stop >= 3:
        gemm2.m_main(a, only_wave)
    Stamps.flush(a, "M")
    a("L_end:")
    a("s_endpgm")

    head = open("cdna_kernels/" + KNAME + ".s.ref").read().split("; Override launch")[0]
    txt = head + f"; @launch grid=(256,1,1) block=(512,1,1) lds={LDS_BYTES}\n"
    txt += f""".amdgcn_target "amdgcn-amd-amdhsa--gfx950"
.text
.globl {name}
.p2align 8
.type {name},@function
{name}:
""" + a.text() + f""".section .rodata,"a"
.p2align 6
.amdhsa_kernel {name}
  .amdhsa_next_free_vgpr 256
  .amdhsa_next_free_sgpr 102
  .amdhsa_accum_offset 256
  .amdhsa_group_segment_fixed_size 0
  .amdhsa_kernarg_size 104
  .amdhsa_user_sgpr_count 2
  .amdhsa_user_sgpr_kernarg_segment_ptr 1
  .amdhsa_system_sgpr_workgroup_id_x 1
.end_amdhsa_kernel
"""
    return txt


if __name__ == "__main__":
    if "--cyc" in sys.argv:
        sys.argv.remove("--cyc")
        Stamps.cyc = True
    if "--stamp" in sys.argv:
        sys.argv.remove("--stamp")
        Stamps.on = True
    stop = int(sys.argv[1]) if len(sys.argv) > 1 else 99
    out = sys.argv[2] if len(sys.argv) > 2 else "cdna_kernels/" + KNAME + ".s"
    open(out, "w").write(build(stop))
    if Stamps.on:
        import json
        json.dump(dict(Stamps.names, cyc=Stamps.cyc), open(out + ".json", "w"))
```

```python
KNAME = "sequential_preLN__ssm_conv_h3__glu_gated_swiglu__prompt"

S, D, F = 2048, 512, 1792
RS = 4352
WS_KVR = 0x000000
WS_XT = 0x240000
WS_HT = 0x480000
WS_H = 0x6C0000
WS_ST1 = 0xDC0000
WS_CS = 0xDD8000
WS_FLAG = 0xDC8000
WS_REC = 0xE10000
WS_G = 0x1000000
WS_WSH = 0x1500000
WS_SIZE = 0x1900000
WS_STAMP = 0xEA0000

LDS_BYTES = 163840

sX, sK, sV, sSH, sSK, sSD, sBX, sW1, sW3, sW2, sOUT, sDBG, sWS = range(16, 42, 2)
sWAVE = 3
sPI = 73
sLOC = 79
SRD_WS = 44


class Asm:
    def __init__(self):
        self.lines = []
        self.nlabel = 0

    def __call__(self, text=""):
        for ln in text.split("\n"):
            ln = ln.strip()
            if ln:
                self.lines.append(ln if ln.endswith(":") else "  " + ln)

    def label(self, stem):
        self.nlabel += 1
        return f"L_{stem}_{self.nlabel}"

    def c(self, text):
        self.lines.append("  ; " + text)

    def srd(self, r, ptr, size, off_sgpr=None, off_imm=None):
        if off_sgpr is not None:
            self(f"s_add_u32 s{r}, s{ptr}, s{off_sgpr}")
            self(f"s_addc_u32 s{r+1}, s{ptr+1}, 0")
        elif off_imm:
            self(f"s_add_u32 s{r}, s{ptr}, {off_imm}")
            self(f"s_addc_u32 s{r+1}, s{ptr+1}, 0")
        else:
            self(f"s_mov_b32 s{r}, s{ptr}")
            self(f"s_mov_b32 s{r+1}, s{ptr+1}")
        self(f"s_mov_b32 s{r+2}, {size}")
        self(f"s_mov_b32 s{r+3}, 0x00020000")

    def text(self):
        return "\n".join(self.lines) + "\n"


def vr(a, n):
    return f"v[{a}:{a+n-1}]" if n > 1 else f"v{a}"


def sr(a, n):
    return f"s[{a}:{a+n-1}]" if n > 1 else f"s{a}"


def interleave(main, fill, start=0, end=None):
    end = len(main) if end is None else end
    n = end - start
    out = []
    for i, m in enumerate(main):
        out.append(m)
        if start <= i < end:
            j = i - start
            out += fill[(len(fill) * j) // n:(len(fill) * (j + 1)) // n]
    return out


STAMP_REGS = [88, 89, 90, 91, 92, 93, 94, 95, 96, 97, 98, 99, 42, 43, 12, 13]


class Stamps:
    on = False
    cyc = False
    names = {}

    @classmethod
    def put(cls, a, role, name):
        if not cls.on:
            return
        import os
        only = os.environ.get("STAMPSET")
        if name not in ("start", "end") and (name.startswith("g:") != bool(only)):
            return
        lst = cls.names.setdefault(role, [])
        lst.append(name)
        a(("s_memtime" if (name.startswith("cyc") or cls.cyc) else "s_memrealtime") + " s[100:101]")
        a("s_waitcnt lgkmcnt(0)")
        a(f"s_mov_b32 s{STAMP_REGS[len(lst) - 1]}, s100")

    @classmethod
    def flush(cls, a, role):
        if not cls.on:
            return
        a("s_waitcnt vmcnt(0)")
        cls.put(a, role, "end")
        import os
        pick = os.environ.get("DBGOUT")
        if pick:
            want = {"L": ["issued", "tile_landed", "tile_stored", "kv_landed", "st1", "sync2", "sync3", "end"],
                    "M": ["B3", "conv_mfma", "hT_stored", "G0", "G8", "H_stored", "K0", "end"]}[role]
            lab = a.label("dbg")
            a(f"s_cmp_lg_u32 s2, {pick}")
            a(f"s_cbranch_scc1 {lab}")
            a(f"s_cmp_lg_u32 s{sWAVE}, {0 if role == 'L' else 4}")
            a(f"s_cbranch_scc1 {lab}")
            for i, n in enumerate(want):
                a(f"s_sub_u32 s6, s{STAMP_REGS[cls.names[role].index(n)]}, s{STAMP_REGS[0]}")
                a(f"v_writelane_b32 v0, s6, {i}")
            a.srd(48, sDBG, 256)
            a(f"""
            v_mbcnt_lo_u32_b32 v1, -1, 0
            v_lshlrev_b32 v1, 2, v1
            s_mov_b64 exec, 0xff
            buffer_store_dword v0, v1, s[48:51], 0 offen offset:{0 if role == 'L' else 32}
            {lab}:
            """)
            return
        for i in range(len(cls.names[role])):
            a(f"v_writelane_b32 v0, s{STAMP_REGS[i]}, {i}")
        a(f"""
        v_mbcnt_lo_u32_b32 v1, -1, 0
        v_mbcnt_hi_u32_b32 v1, -1, v1
        v_lshlrev_b32 v1, 2, v1
        s_lshl_b32 s6, s2, 3
        s_add_u32 s6, s6, s{sWAVE}
        s_lshl_b32 s6, s6, 7
        s_add_u32 s6, s6, {WS_STAMP}
        s_mov_b64 exec, 0xffffffff
        buffer_store_dword v0, v1, s[{SRD_WS}:{SRD_WS+3}], s6 offen
        """)
```

```python
import sys
import os
from common import *
from p0 import *
from conv import *
from sync import *

def only_wave(a, w, body):
    lab = a.label("ow")
    a(f"s_cmp_lg_u32 s{sWAVE}, {w}")
    a(f"s_cbranch_scc1 {lab}")
    body()
    a(f"{lab}:")


def build(stop=99):
    a = Asm()
    name = KNAME + "_kernel"
    a(f"""
    L_begin:
    s_cmp_ge_u32 s2, 256
    s_cbranch_scc1 L_end
    s_load_dwordx16 s[16:31], s[0:1], 0
    s_load_dwordx8 s[32:39], s[0:1], 64
    s_load_dwordx2 s[40:41], s[0:1], 96
    v_lshrrev_b32 v1, 6, v0
    s_mov_b32 s{sMASK}, 0xffff0000
    v_readfirstlane_b32 s{sWAVE}, v1
    s_mov_b32 s{sSELLO}, 0x05040100
    s_mov_b32 s{sSELHI}, 0x07060302
    s_and_b32 s6, s2, 7
    s_lshl_b32 s6, s6, 5
    s_lshr_b32 s7, s2, 3
    s_add_u32 s{sPI}, s6, s7
    s_waitcnt lgkmcnt(0)
    """)
    wsoff = int(os.environ.get("WSOFF", "0"), 0)
    if wsoff:
        a(f"s_add_u32 s{sWS}, s{sWS}, {wsoff}")
        a(f"s_addc_u32 s{sWS+1}, s{sWS+1}, 0")
    a.srd(SRD_WS, sWS, WS_SIZE)
    tag_load(a)
    a(f"s_cmp_ge_u32 s{sWAVE}, 4")
    a("s_cbranch_scc1 L_roleM")

    a.c("================ L waves")
    Stamps.put(a, "L", "start")
    if os.environ.get("TP"):
        only_wave(a, 0, lambda: touch_pages(a, 0))
    l_tile_issue(a)
    l_tile_setup(a)
    Stamps.put(a, "L", "issued")
    a("s_barrier")
    a("s_waitcnt lgkmcnt(0)")
    tag_make(a)
    l_tile_compute(a)
    if XLATE:
        a("s_barrier")
    Stamps.put(a, "L", "tile_done")
    arrive(a, L_CNT + 20, 66)
    await_count(a, L_CNT + 20, 4, 66)
    Stamps.put(a, "L", "B1")
    l_kv_store(a)
    Stamps.put(a, "L", "tile_stored")
    arrive(a, L_CNT + 32, 66)
    await_count(a, L_CNT + 32, 4, 66)
    a("v_and_b32 v1, 63, v0")
    import gemm1
    import gemm2
    lab = a.label("s1")
    a(f"s_cmp_lg_u32 s{sWAVE}, 0")
    a(f"s_cbranch_scc1 {lab}_x")
    a.c("---- L wave 0: hand-offs")
    post(a, F1, sPI, 8, shift=7, local=True)
    poll_local_or_global(a, 1, 8, lambda: l0_republish(a))
    Stamps.put(a, "L", "sync1")
    kvr_dma(a)
    a("s_waitcnt vmcnt(0)")
    arrive(a, L_CNT + 16, 8)
    Stamps.put(a, "L", "kv_landed")
    a(f"s_cmp_eq_u32 s{sLOC}, 0")
    a(f"s_cbranch_scc1 {lab}_g")
    a(f"s_and_b32 s10, s{sPI}, 0xe0")
    poll(a, F1X, 32, 1, 8, first_sgpr=10, shift=7, local=True)
    a(f"{lab}_g:")
    await_count(a, L_CNT, 7, 8)
    xrow_dma(a)
    poll(a, F1B, 256, 1, 8)
    Stamps.put(a, "L", "sync1b")
    stats_dma(a)
    a("s_waitcnt vmcnt(0)")
    arrive(a, L_CNT + 4, 8)
    Stamps.put(a, "L", "st1")
    gemm1.l_setup(a)
    gemm2.l_setup(a)
    await_count(a, L_CNT + 28, 3, 8, sleep=2)
    Stamps.put(a, "L", "W_landed")
    await_count(a, L_CNT + 12, 5, 8, sleep=2)
    a(f"s_sleep {int(os.environ.get('BACKOFF', 32))}")
    poll(a, F2, 256, 1, 8)
    if os.environ.get("WBL2"):
        a("s_cmp_ge_u32 s2, 8")
        a(f"s_cbranch_scc1 {lab}")
        a("buffer_wbl2 sc1")
    a("s_cmp_lg_u32 s2, 0")
    a(f"s_cbranch_scc1 {lab}")
    post_epoch(a, 8)
    a(f"s_branch {lab}")
    a(f"{lab}_x:")
    a.c("---- L waves 1..3: x tile, column sums, weight prefill")
    l_x_store(a)
    gemm1.l_setup(a)
    gemm2.l_setup(a)
    a("s_waitcnt vmcnt(0)")
    arrive_post(a, L_CNT, 7, F1X, sPI, 8, local=True)

    def csf():
        await_count(a, L_CNT + 8, 4, 8)
        l_cs_final(a)
        a("s_waitcnt vmcnt(0)")
        arrive_post(a, L_CNT + 12, 5, F2, 2, 8)
    if os.environ.get("LATEW"):
        await_count(a, L_CNT + 16, 1, 8, sleep=2)
    gemm1.l_prefill_w(a, only_wave)
    only_wave(a, 1, csf)
    a("s_waitcnt vmcnt(0)")
    arrive(a, L_CNT + 28, 8)
    a(f"{lab}:")
    if stop >= 2:
        Stamps.put(a, "L", "sync2")
        a("s_barrier")
        gemm1.l_main(a, only_wave)
    if stop >= 3:
        gemm2.l_main(a, only_wave)
    Stamps.flush(a, "L")
    a("s_branch L_end")

    a("L_roleM:")
    a.c("================ M waves")
    a(f"""
    s_sub_u32 s4, s{sWAVE}, 4
    v_and_b32 v1, 63, v0
    """)
    Stamps.put(a, "M", "start")
    if not os.environ.get("NOCODE"):
        only_wave(a, 7, lambda: touch_code(a))
    if XLATE:
        a("s_barrier")
        a("s_barrier")
    m_stats_issue(a)
    m_conv_issue(a)
    a(f"v_mov_b32 v13, {L_CNT}")
    for o in range(0, 48, 8):
        a(f"ds_write_b64 v13, v[14:15] offset:{o}")
    a("s_waitcnt lgkmcnt(0)")
    a("s_barrier")
    cs_issue(a)
    early = bool(os.environ.get("EARLY2"))
    if early:
        m_touch_w2(a)
    tag_make(a)
    m_stats_finish(a, 10 if early else 9)
    a(f"s_waitcnt vmcnt({6 if early else 5})")
    m_conv_pad(a)
    a("s_waitcnt lgkmcnt(0)")
    Stamps.put(a, "M", "k_landed")
    arrive(a, L_CNT + 36, 16)
    await_count(a, L_CNT + 36, 4, 16)
    Stamps.put(a, "M", "B2")
    m_conv_frags(a)

    def x0():
        await_count(a, L_CNT + 32, 4, 16)
        m_x_store0(a)
    only_wave(a, 7, x0)
    a("s_waitcnt vmcnt(0) lgkmcnt(0)")
    arrive_post(a, L_CNT, 7, F1X, sPI, 16, local=True)
    arrive_post(a, L_CNT + 24, 4, F1B, 2, 16)
    cs_partial(a)
    a("s_waitcnt lgkmcnt(0)")
    arrive(a, L_CNT + 8, 16)
    Stamps.put(a, "M", "frags")
    await_count(a, L_CNT + 16, 1, 2)
    Stamps.put(a, "M", "B3")
    a(f"s_setprio {os.environ.get('PRIO', 1)}")
    m_conv_main(a)
    m_conv_exchange_write(a)
    arrive(a, L_CNT + 4, 2)
    Stamps.put(a, "M", "conv_mfma")
    await_count(a, L_CNT + 4, 5, 2)
    m_conv_epilogue(a)
    a("s_waitcnt vmcnt(0)")
    arrive_post(a, L_CNT + 12, 5, F2, 2, 2)
    if not early:
        m_touch_w2(a)
        a("s_waitcnt vmcnt(0)")
    Stamps.put(a, "M", "hT_stored")
    if stop >= 2:
        gemm1.m_setup(a)
        a("s_barrier")
        gemm1.m_main(a)
    if stop >= 3:
        gemm2.m_main(a, only_wave)
    Stamps.flush(a, "M")
    a("L_end:")
    a("s_endpgm")

    head = open("cdna_kernels/" + KNAME + ".s.ref").read().split("; Override launch")[0]
    txt = head + f"; @launch grid=(256,1,1) block=(512,1,1) lds={LDS_BYTES}\n"
    txt += f""".amdgcn_target "amdgcn-amd-amdhsa--gfx950"
.text
.globl {name}
.p2align 8
.type {name},@function
{name}:
""" + a.text() + f""".section .rodata,"a"
.p2align 6
.amdhsa_kernel {name}
  .amdhsa_next_free_vgpr 256
  .amdhsa_next_free_sgpr 102
  .amdhsa_accum_offset 256
  .amdhsa_group_segment_fixed_size 0
  .amdhsa_kernarg_size 104
  .amdhsa_user_sgpr_count 2
  .amdhsa_user_sgpr_kernarg_segment_ptr 1
  .amdhsa_system_sgpr_workgroup_id_x 1
.end_amdhsa_kernel
"""
    return txt


if __name__ == "__main__":
    if "--cyc" in sys.argv:
        sys.argv.remove("--cyc")
        Stamps.cyc = True
    if "--stamp" in sys.argv:
        sys.argv.remove("--stamp")
        Stamps.on = True
    stop = int(sys.argv[1]) if len(sys.argv) > 1 else 99
    out = sys.argv[2] if len(sys.argv) > 2 else "cdna_kernels/" + KNAME + ".s"
    open(out, "w").write(build(stop))
    if Stamps.on:
        import json
        json.dump(dict(Stamps.names, cyc=Stamps.cyc), open(out + ".json", "w"))
```

```python
from common import *
from p0 import *
from sync import *

import os
ABL = os.environ.get('ABL', '')
NS = 7
ROT = int(os.environ.get('ROT', 0))
SHUF = int(os.environ.get('SHUF', 0))
WSLOT, HSLOT = 14336, 8192
L_COEF = LMISC + 4096
sRB, sFB, sGI = 76, 77, 78
sSG = 5
sEX56 = 80
sLW = 82
sM0W, sM0H = 83, 84


def tile_ids(a):
    a(f"""
    s_and_b32 s6, s2, 7
    s_lshr_b32 s7, s2, 3
    s_lshr_b32 s8, s6, 1
    s_lshl_b32 s8, s8, 2
    s_and_b32 s9, s7, 3
    s_add_u32 s{sRB}, s8, s9
    s_and_b32 s8, s6, 1
    s_lshl_b32 s8, s8, 3
    s_lshr_b32 s9, s7, 2
    s_add_u32 s{sFB}, s8, s9
    s_lshl_b32 s8, s{sRB}, 4
    s_add_u32 s{sGI}, s8, s{sFB}
    s_and_b32 s8, s{sRB}, 3
    s_lshl_b32 s8, s8, 2
    s_add_u32 s8, s8, s{sFB}
    s_and_b32 s{sSG}, s8, 15
    """)


vWO, vHO0, vHO1, vSO, vCW, vWO0, vWO1 = 2, 3, 4, 5, 6, 7, 93
vWS = 94
SUM1, SUM2 = 32, 40
RD = 48
UN = 64


def l_setup(a):
    a.c("GEMM1 loader setup")
    tile_ids(a)
    a.srd(48, sW1, D * F * 2)
    a.srd(52, sW3, D * F * 2)
    a(f"""
    s_mov_b32 s{sEX56}, -1
    s_mov_b32 s{sEX56+1}, 0x00ffffff
    v_mul_u32_u24 v8, 4682, v1
    v_lshrrev_b32 v8, 16, v8             ; lane / 14
    v_mul_u32_u24 v9, 14, v8
    v_sub_u32 v9, v1, v9                 ; lane % 14
    v_mul_u32_u24 v8, {F*2}, v8
    v_lshl_add_u32 v8, v9, 4, v8
    s_mul_i32 s6, s{sFB}, 224
    v_add_u32 v{vWO0}, s6, v8
    s_mul_i32 s7, s{sWAVE}, {8 * F * 2}
    s_add_u32 s6, s6, s7
    v_add_u32 v{vWO}, s6, v8
    v_add_u32 v{vWO1}, {4 * F * 2}, v{vWO}
    s_mul_i32 s6, s{sFB}, 114688
    s_mul_i32 s7, s{sWAVE}, 1792
    s_add_u32 s6, s6, s7
    s_add_u32 s6, s6, {WS_WSH}
    v_lshlrev_b32 v{vWS}, 4, v1
    v_add_u32 v{vWS}, s6, v{vWS}
    s_mul_i32 s{sM0W}, s{sWAVE}, 1792
    s_lshl_b32 s{sM0H}, s{sWAVE}, 11
    s_add_u32 s{sM0H}, s{sM0H}, {LH}
    v_lshrrev_b32 v8, 4, v1              ; row
    v_and_b32 v9, 15, v1
    v_lshlrev_b32 v10, 1, v8
    v_xor_b32 v9, v9, v10                ; c ^ 2 row
    v_xor_b32 v10, 8, v9
    v_mul_u32_u24 v11, {RS}, v8
    s_mul_i32 s6, s{sWAVE}, {8 * RS}
    s_lshl_b32 s7, s{sRB}, 8
    s_add_u32 s6, s6, s7
    s_add_u32 s6, s6, {WS_HT}
    v_add_u32 v11, s6, v11
    v_lshl_add_u32 v{vHO0}, v9, 4, v11
    v_lshl_add_u32 v{vHO1}, v10, 4, v11
    v_add_u32 v{vHO1}, {4 * RS}, v{vHO1}
    v_and_b32 v8, 31, v1
    s_lshl_b32 s6, s{sWAVE}, 5
    v_add_u32 v8, s6, v8
    v_lshlrev_b32 v{vCW}, 4, v8          ; 16 * row
    v_lshrrev_b32 v9, 5, v1
    v_lshl_add_u32 v{vSO}, v9, 14, v{vCW}
    v_add_u32 v{vCW}, {L_COEF}, v{vCW}
    """)


def stage_index(a, s):
    a(f"s_add_u32 s10, s{sSG}, {s}")
    a("s_and_b32 s10, s10, 15")


def w_dma(a, s, for_wave0=False, pace=None):
    slot = s % NS
    a(f"s_mov_b64 exec, s[{sEX56}:{sEX56+1}]")
    stage_index(a, s)
    a(f"s_mul_i32 s8, s10, {32 * F * 2}")
    a(f"s_add_u32 s9, s8, {4 * F * 2}")
    for m in range(2):
        for q in range(2):
            lds = LW + slot * WSLOT + 7168 * m + 896 * q
            a(f"s_mov_b32 m0, {lds}" if for_wave0 else f"s_add_u32 m0, s{sM0W}, {lds}")
            a("s_nop 0" if pace is None else f"s_waitcnt vmcnt({pace - 1})")
            a(f"buffer_load_dwordx4 v{vWO0 if for_wave0 else vWO}, s[{48+4*m}:{51+4*m}], s{8+q} offen{WNT} lds")
    a("s_mov_b64 exec, -1")


def stage_dma(a, s):
    slot = s % NS
    w = LW + slot * WSLOT
    if SHUF:
        a(f"""
        s_add_u32 s10, s{sSG}, {s}
        s_and_b32 s10, s10, 15
        s_add_u32 m0, s{sM0H}, {slot * HSLOT}
        s_mul_i32 s8, s10, {32 * RS}
        buffer_load_dwordx4 v{vHO0}, s[{SRD_WS}:{SRD_WS+3}], s8 offen sc1 lds
        s_add_u32 m0, s{sM0H}, {slot * HSLOT + 1024}
        s_mul_i32 s9, s10, 7168
        buffer_load_dwordx4 v{vHO1}, s[{SRD_WS}:{SRD_WS+3}], s8 offen sc1 lds
        s_add_u32 m0, s{sM0W}, {w}
        s_mov_b32 exec_hi, 0x00ffffff
        buffer_load_dwordx4 v{vWS}, s[{SRD_WS}:{SRD_WS+3}], s9 offen sc1 lds
        buffer_load_dwordx4 v{vWS}, s[{SRD_WS}:{SRD_WS+3}], s9 offen offset:896 sc1 lds
        s_add_u32 m0, s{sM0W}, {w + 7168}
        s_add_u32 s9, s9, {16 * 114688}
        buffer_load_dwordx4 v{vWS}, s[{SRD_WS}:{SRD_WS+3}], s9 offen sc1 lds
        buffer_load_dwordx4 v{vWS}, s[{SRD_WS}:{SRD_WS+3}], s9 offen offset:896 sc1 lds
        s_mov_b32 exec_hi, -1
        """)
        return
    a(f"""
    s_add_u32 s10, s{sSG}, {s}
    s_and_b32 s10, s10, 15
    s_add_u32 m0, s{sM0H}, {slot * HSLOT}
    s_mul_i32 s8, s10, {32 * RS}
    buffer_load_dwordx4 v{vHO0}, s[{SRD_WS}:{SRD_WS+3}], s8 offen sc1 lds
    s_add_u32 m0, s{sM0H}, {slot * HSLOT + 1024}
    s_mul_i32 s9, s10, {32 * F * 2}
    buffer_load_dwordx4 v{vHO1}, s[{SRD_WS}:{SRD_WS+3}], s8 offen sc1 lds
    s_add_u32 m0, s{sM0W}, {w}
    s_mov_b32 exec_hi, 0x00ffffff
    buffer_load_dwordx4 v{vWO}, s[48:51], s9 offen lds
    s_add_u32 m0, s{sM0W}, {w + 896}
    s_nop 0
    buffer_load_dwordx4 v{vWO1}, s[48:51], s9 offen lds
    s_add_u32 m0, s{sM0W}, {w + 7168}
    s_nop 0
    buffer_load_dwordx4 v{vWO}, s[52:55], s9 offen lds
    s_add_u32 m0, s{sM0W}, {w + 7168 + 896}
    s_nop 0
    buffer_load_dwordx4 v{vWO1}, s[52:55], s9 offen lds
    s_mov_b32 exec_hi, -1
    """)


def h_dma(a, s):
    slot = s % NS
    stage_index(a, s)
    a(f"s_add_u32 m0, s{sM0H}, {slot * HSLOT}")
    a(f"s_mul_i32 s8, s10, {32 * RS}")
    a(f"buffer_load_dwordx4 v{vHO0}, s[{SRD_WS}:{SRD_WS+3}], s8 offen sc1 lds")
    a(f"s_add_u32 m0, s{sM0H}, {slot * HSLOT + 1024}")
    a("s_nop 0")
    a(f"buffer_load_dwordx4 v{vHO1}, s[{SRD_WS}:{SRD_WS+3}], s8 offen sc1 lds")


NPRE = NS
PACE = int(os.environ.get('PACE', 5))


def l_prefill_w(a, only_wave):
    a.c("GEMM1: weight ring prefill")
    for s in range(NS):
        w_dma(a, s, pace=PACE)
        only_wave(a, 1 + s % 3, lambda: w_dma(a, s, for_wave0=True, pace=PACE))


REC = 32


def rec_loads(a):
    a(f"s_lshl_b32 s6, s{sRB}, 15")
    a(f"s_add_u32 s6, s6, {WS_REC}")
    for j in range(8):
        a(f"buffer_load_dwordx4 {vr(REC + 4*j, 4)}, v{vSO}, s[{SRD_WS}:{SRD_WS+3}], s6 offen offset:{2048 * (j & 1)} sc1")
        if j & 1 and j < 7:
            a("s_add_u32 s6, s6, 4096")


def rec_check(a):
    lab = a.label("rec")
    a(f"s_mov_b32 s7, {SPIN_LIMIT}")
    a(f"{lab}:")
    a(f"v_cmp_eq_u64 vcc, s[{sTAG}:{sTAG+1}], {vr(REC + 2, 2)}")
    for j in range(1, 8):
        a(f"v_cmp_eq_u64 s[{8 + 2*(j & 1)}:{9 + 2*(j & 1)}], s[{sTAG}:{sTAG+1}], {vr(REC + 4*j + 2, 2)}")
        if j > 1:
            a(f"s_and_b64 vcc, vcc, s[{8 + 2*((j-1) & 1)}:{9 + 2*((j-1) & 1)}]")
    a(f"""
    s_nop 1
    s_and_b64 vcc, vcc, s[10:11]
    s_cmp_eq_u64 vcc, exec
    s_cbranch_scc1 {lab}_ok
    s_sub_u32 s7, s7, 1
    s_cmp_eq_u32 s7, 0
    s_cbranch_scc1 {lab}_ok
    s_sleep 1
    """)
    rec_loads(a)
    a(f"""
    s_waitcnt vmcnt(0)
    s_branch {lab}
    {lab}_ok:
    """)


def rec_finish(a):
    for step in (4, 8, 16):
        for j in range(0, 32, 2 * step):
            a(f"v_add_f32 v{REC + j}, v{REC + j}, v{REC + j + step}")
            a(f"v_add_f32 v{REC + j + 1}, v{REC + j + 1}, v{REC + j + step + 1}")
    a(f"""
    v_mov_b32 v{REC + 4}, v{REC}
    v_mov_b32 v{REC + 5}, v{REC + 1}
    s_nop 1
    v_permlane32_swap_b32 v{REC}, v{REC + 4}
    v_permlane32_swap_b32 v{REC + 1}, v{REC + 5}
    s_nop 1
    v_add_f32 v{REC}, v{REC}, v{REC + 4}
    v_add_f32 v{REC + 1}, v{REC + 1}, v{REC + 5}
    v_mul_f32 v{REC + 8}, 0xbb000000, v{REC}            ; -mean
    v_mul_f32 v{REC + 1}, 0x3b000000, v{REC + 1}
    v_fma_f32 v{REC + 1}, -v{REC + 8}, v{REC + 8}, v{REC + 1}
    v_max_f32 v{REC + 1}, 0, v{REC + 1}
    v_add_f32 v{REC + 10}, 0x3727c5ac, v{REC + 1}
    v_rsq_f32 v{REC + 11}, v{REC + 10}
    s_nop 0
    v_mul_f32 v{REC + 9}, 0xbfb8aa3b, v{REC + 11}
    ds_write_b128 v{vCW}, {vr(REC + 8, 4)}
    s_waitcnt lgkmcnt(0)
    """)


L_CS = LMISC + 512


def cs_fetch(a):
    a(f"""
    v_cmp_lt_u32 vcc, 27, v1
    v_mov_b32 v9, {F * 4 - 448}
    s_mul_i32 s6, s{sFB}, 448
    v_cndmask_b32 v9, 0, v9, vcc
    v_lshl_add_u32 v8, v1, 4, v9
    s_add_u32 s6, s6, {WS_CS}
    """)
    for q in range(4):
        a(f"buffer_load_dwordx4 {vr(64 + 4*q, 4)}, v8, s[{SRD_WS}:{SRD_WS+3}], s6 offen sc1")
        if q < 3:
            a(f"s_add_u32 s6, s6, {2 * F * 4}")


def cs_collect(a):
    for e in range(4):
        a(f"v_add_f32 v{64+e}, v{64+e}, v{68+e}")
        a(f"v_add_f32 v{72+e}, v{72+e}, v{76+e}")
    a(f"v_lshlrev_b32 v8, 4, v1")
    a(f"v_add_u32 v8, {L_CS}, v8")
    for e in range(4):
        a(f"v_add_f32 v{64+e}, v{64+e}, v{72+e}")
    a("ds_write_b128 v8, v[64:67]")
    a("s_waitcnt lgkmcnt(0)")


C_RDY, C_FREE = L_CNT + 48, L_CNT + 52
FLAGS = int(os.environ.get('FLAGS', 0))
vRDY, vONE = 95, 96


def l_main_flags(a, only_wave):
    a.c("GEMM1 loader")
    import gemm2
    issued = []

    def stage(s):
        if s >= NPRE:
            stage_dma(a, s)
        else:
            h_dma(a, s)
        issued.append((s, 2 if s < NPRE else 6))

    def wait_for(stage):
        n = 0
        for s, k in reversed(issued):
            if s <= stage:
                break
            n += k
        a(f"s_waitcnt vmcnt({n})")

    def ready(k):
        wait_for(2 * k + 1)
        a(f"""
        s_mov_b64 exec, 1
        ds_add_u32 v{vRDY}, v{vONE}
        s_mov_b64 exec, -1
        """)

    a(f"v_mov_b32 v{vRDY}, {C_RDY}")
    a(f"v_mov_b32 v{vONE}, 1")
    for s in range(3):
        stage(s)
    wait_for(1)
    a("s_barrier")
    for s in range(3, NS):
        stage(s)
    ready(1)
    ready(2)
    only_wave(a, 2, lambda: cs_fetch(a))
    for n in range(7):
        await_count(a, C_FREE, 4 * (n + 1), 8, sleep=int(os.environ.get('LSLEEP', 2)))
        if 2 * n + 7 < 16:
            stage(2 * n + 7)
        if 2 * n + 8 < 16:
            stage(2 * n + 8)
        if n == 4:
            rec_loads(a)
            issued.append((15.5, 8))
        if n <= 4:
            ready(n + 3)
        if n >= 4:
            issued.append((12 + n, gemm2.l_round1(a, n - 4)))
        if n == 4:
            wait_for(15.5)
            rec_check(a)
            rec_finish(a)
            only_wave(a, 2, lambda: cs_collect(a))
    a("s_barrier")


def l_main(a, only_wave):
    if FLAGS:
        return l_main_flags(a, only_wave)
    a.c("GEMM1 loader loop")
    import gemm2
    issued = []

    def stage(s):
        if s >= NPRE:
            stage_dma(a, s)
        else:
            h_dma(a, s)
        issued.append((s, 2 if s < NPRE else 6))

    def wait_for(stage):
        n = 0
        for s, k in reversed(issued):
            if s <= stage:
                break
            n += k
        a(f"s_waitcnt vmcnt({n})")

    for s in range(3):
        stage(s)
    wait_for(1)
    a("s_barrier")
    for s in range(3, NS):
        stage(s)
    wait_for(3)
    a("s_barrier")
    for n in range(6):
        if n == 0:
            only_wave(a, 2, lambda: cs_fetch(a))
        for s in (2 * n + 7, 2 * n + 8):
            if s < 16:
                stage(s)
        if n == 4:
            rec_loads(a)
            issued.append((15.5, 8))
            issued.append((16, gemm2.l_round1(a, 0)))
        if n == 5:
            wait_for(15.5)
            rec_check(a)
            issued.append((17, gemm2.l_round1(a, 1)))
        else:
            wait_for(2 * n + 5)
        pass
        a("s_barrier")
    gemm2.l_round1(a, 2)
    rec_finish(a)
    only_wave(a, 2, lambda: cs_collect(a))
    pass
    a("s_barrier")


ACC = 16
SET = (128, 176)
CSR = 224
vWA0, vWA1, vW30, vW31 = 2, 3, 4, 5
vH = 6
vSO_, vCA, vC3, vCO = 10, 11, 12, 13
sU0, sU1, sU3, sRO = 83, 84, 85, 12
vRO = 14
PS = 224


def acc(p, gu, sl):
    u = (2 * p + gu) * 4 + sl if p < 3 else 24 + 2 * gu + sl
    return ACC + 4 * u


def m_setup(a):
    a.c("GEMM1 matrix-wave setup")
    tile_ids(a)
    a.srd(56, sW2, D * F * 2)
    a(f"""
    s_and_b32 s10, s{sRB}, 3
    s_lshl_b32 s10, s10, 2
    s_add_u32 s10, s10, s4
    s_lshl_b32 s10, s10, 14
    s_and_b32 s11, s{sFB}, 7
    s_lshl_b32 s11, s11, 7
    s_add_u32 s10, s10, s11
    s_and_b32 s11, s{sFB}, {ROT}
    s_lshl_b32 s11, s11, {1 if ROT == 1 else 0}
    s_add_u32 s11, s11, 2
    s_and_b32 s11, s11, 3
    s_mul_i32 s11, s11, {224 * 1024}
    s_add_u32 s10, s10, s11
    v_bfe_u32 v17, v1, 4, 1
    v_mul_u32_u24 v17, 896, v17
    v_and_b32 v18, 15, v1
    v_add_u32 v17, v17, v18
    v_lshlrev_b32 v17, 10, v17
    buffer_load_dword v{PS + 30}, v17, s[56:59], s10 offen
    s_and_b32 s6, s4, 1                  ; wt
    s_lshr_b32 s7, s4, 1                 ; wf
    v_lshrrev_b32 v14, 2, v1             ; row 0..15
    v_and_b32 v15, 3, v1
    v_lshlrev_b32 v15, 3, v15
    v_mul_u32_u24 v16, 224, v14
    v_add_u32 v16, v16, v15
    s_lshl_b32 s8, s7, 7
    v_add_u32 v{vWA0}, s8, v16
    v_add_u32 v{vWA1}, {4 * WSLOT}, v{vWA0}
    v_add_u32 v{vW30}, 96, v16
    v_add_u32 v{vW31}, {4 * WSLOT + 96}, v16
    v_lshl_add_u32 v16, v14, 8, v15
    v_add_u32 v16, {LH}, v16
    v_and_b32 v17, 7, v14
    s_lshl_b32 s8, s6, 2
    s_lshl_b32 s9, s7, 1
    """)
    for sl in range(4):
        a(f"""
        s_xor_b32 s10, s9, {sl}
        s_add_u32 s10, s10, s8
        v_xor_b32 v18, s10, v17
        v_lshl_add_u32 v{vH + sl}, v18, 5, v16
        """)
    a(f"""
    v_and_b32 v14, 15, v1
    v_lshrrev_b32 v15, 4, v1
    s_add_u32 s10, s8, s9
    s_lshl_b32 s10, s10, 4
    v_add_u32 v16, s10, v14
    v_lshlrev_b32 v{vCO}, 4, v16
    v_add_u32 v{vCO}, {L_COEF}, v{vCO}
    v_lshlrev_b32 v{vSO_}, 4, v1
    s_mul_i32 s10, s{sGI}, 28672
    s_add_u32 s10, s10, {WS_H}
    s_lshl_b32 s11, s6, 1
    s_add_u32 s12, s11, s7
    s_mul_i32 s12, s12, 7168
    s_add_u32 s12, s12, s10
    s_add_u32 s{sU3}, s12, 3072
    s_lshl_b32 s13, s7, 12
    s_add_u32 s{sU0}, s12, s13
    s_xor_b32 s12, s7, 1
    s_add_u32 s12, s12, s11
    s_mul_i32 s12, s12, 7168
    s_add_u32 s12, s12, s10
    s_add_u32 s{sU1}, s12, s13
    s_xor_b32 s10, s9, 2
    s_add_u32 s10, s10, s8
    v_lshrrev_b32 v17, 5, v1
    v_add_u32 v17, s10, v17
    v_lshl_add_u32 v17, v17, 4, v14
    v_lshlrev_b32 v{vRO}, 4, v17
    s_lshl_b32 s10, s{sRB}, 4
    s_add_u32 s10, s10, s{sSG}
    s_lshl_b32 s10, s10, 11
    s_add_u32 s{sRO}, s10, {WS_REC}
    v_mov_b32 v{PS + 2}, s{sTAG}
    v_mov_b32 v{PS + 3}, s{sTAG + 1}
    s_mul_i32 s{sLW}, s7, -1024
    s_add_u32 s{sLW}, s{sLW}, 512
    v_lshlrev_b32 v{vC3}, 4, v15
    v_add_u32 v{vC3}, {L_CS}, v{vC3}
    s_lshl_b32 s11, s7, 8
    v_add_u32 v{vCA}, s11, v{vC3}
    """)


def frag_reads(s):
    slot = s % NS
    b = SET[s & 1]
    wa, w3 = (vWA0, vW30) if slot < 4 else (vWA1, vW31)
    wo = (slot % 4) * WSLOT
    ho = slot * HSLOT

    def wf(p, gu):
        r = b + 4 * (2 * p + gu)
        ad, o = (wa, wo + 32 * p + 7168 * gu) if p < 3 else (w3, wo + 7168 * gu)
        return [f"ds_read_b64_tr_b16 {vr(r,2)}, v{ad} offset:{o}", f"ds_read_b64_tr_b16 {vr(r+2,2)}, v{ad} offset:{o + 3584}"]

    def hf(sl):
        r = b + 32 + 4 * sl
        return [f"ds_read_b64_tr_b16 {vr(r,2)}, v{vH + sl} offset:{ho}", f"ds_read_b64_tr_b16 {vr(r+2,2)}, v{vH + sl} offset:{ho + 4096}"]

    out = hf(0) + wf(0, 0) + hf(1) + hf(2) + hf(3) + wf(0, 1)
    for p in range(1, 4):
        out += wf(p, 0) + wf(p, 1)
    return out


def mfmas(s):
    b = SET[s & 1]
    out = []
    for p in range(4):
        for gu in range(2):
            for sl in range(4 if p < 3 else 2):
                d = vr(acc(p, gu, sl), 4)
                c = "0" if s == 0 else d
                out.append(f"v_mfma_f32_16x16x32_bf16 {d}, {vr(b + 4*(2*p+gu), 4)}, {vr(b + 32 + 4*sl, 4)}, {c}")
    return out


def partial_stats():
    part1, part2 = [], []
    for k in range(2):
        src = SET[0] + 32 + 4 * (2 + k)
        u = PS + 8 + 8 * k
        for d in range(4):
            part1.append(f"v_lshlrev_b32 v{u + 2*d}, 16, v{src + d}")
            part1.append(f"v_and_b32 v{u + 2*d + 1}, s{sMASK}, v{src + d}")
    s1 = (PS, PS + 4)
    s2 = (PS + 1, PS + 5)
    for e in range(8):
        for k in range(2):
            u = PS + 8 + 8 * k
            if e == 0:
                part2.append(f"v_mul_f32 v{s2[k]}, v{u}, v{u}")
            else:
                part2.append(f"v_add_f32 v{s1[k]}, v{u + e}, v{u if e == 1 else s1[k]}")
                part2.append(f"v_fmac_f32 v{s2[k]}, v{u + e}, v{u + e}")
    part3 = [f"v_permlane32_swap_b32 v{PS}, v{PS + 4}", f"v_permlane32_swap_b32 v{PS + 1}, v{PS + 5}",
             f"v_add_f32 v{PS}, v{PS}, v{PS + 4}", f"v_add_f32 v{PS + 1}, v{PS + 1}, v{PS + 5}",
             f"v_mov_b32 v{PS + 4}, v{PS}", f"v_mov_b32 v{PS + 5}, v{PS + 1}",
             f"v_permlane16_swap_b32 v{PS}, v{PS + 4}", f"v_permlane16_swap_b32 v{PS + 1}, v{PS + 5}",
             f"v_add_f32 v{PS}, v{PS}, v{PS + 4}", f"v_add_f32 v{PS + 1}, v{PS + 1}, v{PS + 5}",
             f"buffer_store_dwordx4 {vr(PS, 4)}, v{vRO}, s[{SRD_WS}:{SRD_WS+3}], s{sRO} offen sc1"]
    return part1, part2, part3


def place_fill(mf, fill, s):
    gaps = [[] for _ in mf]
    if s >= 5:
        for i, f in enumerate(fill):
            gaps[3 * i + 3].append(f)
    else:
        head, tail = (fill[:-6], fill[-6:]) if len(fill) > 6 else ([], fill)
        for i, f in enumerate(head):
            gaps[2 * i + 3].append(f)
        for i, f in enumerate(tail):
            gaps[25 + i // 2].append(f)
    return [[m] + g for m, g in zip(mf, gaps)]


SLOW = []


def m_main(a):
    import gemm2
    gemm2.m_w2_addresses(a)
    a.c("GEMM1 main loop")
    p1, p2, p3 = partial_stats()
    stat_fill = {0: p1, 1: p2[:8], 2: p2[8:16], 3: p2[16:24], 4: p2[24:] + p3[:2], 5: p3[2:10], 6: p3[10:]}
    a("s_barrier")
    pass
    Stamps.put(a, "M", "G0")
    Stamps.put(a, "M", "cyc0")
    for ln in frag_reads(0):
        a(ln)
    vCA_, vC1, vCV = PS + 24, PS + 25, PS + 26
    if FLAGS:
        a(f"v_mov_b32 v{vCA_}, {C_RDY}")
        a(f"v_mov_b32 v{vC1}, 1")
    for s in range(16):
        a("s_waitcnt lgkmcnt(0)")
        if s & 1 and s < 15 and not FLAGS:
            a("s_barrier")
        nxt = frag_reads(s + 1) if s < 15 else []
        mf = mfmas(s)
        fill = stat_fill.get(s)
        if fill:
            mf = ["\n".join(x) for x in place_fill(mf, fill, s)]
        first = 0
        if FLAGS and s & 1 and s < 15:
            lab = a.label("rdy")
            need = 4 * ((s + 1) // 2)
            mf[0] += f"""
            v_readfirstlane_b32 s6, v{vCV}
            s_mov_b64 exec, 1
            ds_add_u32 v{vCA_}, v{vC1} offset:{C_FREE - C_RDY}
            s_mov_b64 exec, -1"""
            mf[1] += f"""
            s_cmp_lt_u32 s6, {need}
            s_cbranch_scc1 {lab}_w
            {lab}:"""
            SLOW.append(f"""
            {lab}_w:
            ds_read_b32 v{vCV}, v{vCA_}
            s_waitcnt lgkmcnt(0)
            v_readfirstlane_b32 s6, v{vCV}
            s_nop 1
            s_cmp_lt_u32 s6, {need}
            s_cbranch_scc1 {lab}_w
            s_branch {lab}""")
            first = 1
        elif FLAGS and s < 14:
            nxt = nxt + [f"ds_read_b32 v{vCV}, v{vCA_}"]
        for ln in interleave(mf, nxt, first, 25 if FLAGS else 24):
            a(ln)
    a("s_barrier")
    pass
    Stamps.put(a, "M", "G8")
    Stamps.put(a, "M", "cyc1")
    m_epilogue(a)
    Stamps.put(a, "M", "g1_epi")


def m_epilogue(a):
    import gemm2
    a.c("GEMM1 epilogue")
    CO = 128
    a(f"v_add_u32 v14, s{sLW}, v{vCO}")
    a(f"ds_read_b128 {vr(CO, 4)}, v{vCO}")
    a(f"ds_read_b128 {vr(CO + 4, 4)}, v{vCO} offset:256")
    a(f"ds_read_b128 {vr(CO + 8, 4)}, v14")
    a(f"ds_read_b128 {vr(CO + 12, 4)}, v14 offset:256")
    a("s_waitcnt vmcnt(0)")
    for p in range(4):
        for gu in range(2):
            ad, off = (vCA, 64 * p) if p < 3 else (vC3, 192)
            a(f"ds_read_b128 {vr(CSR + 8*p + 4*gu, 4)}, v{ad} offset:{off + 448 * gu}")
    a("s_waitcnt lgkmcnt(0)")
    epilogue_body(a, CO, " sc1")


def epilogue_body(a, CO, pol):
    lolo = "op_sel:[0,0,0] op_sel_hi:[1,0,1]"
    units = [(p, pi) for pi in range(2) for p in range(4) if not (p == 3 and pi == 1)]
    for n, (p, pi) in enumerate(units):
        T = 144 + 16 * (n & 1)
        O = T + 8
        st = []
        sls = (2 * pi, 2 * pi + 1)
        for k, sl in enumerate(sls):
            for hh in range(2):
                g, u = acc(p, 0, sl) + 2 * hh, acc(p, 1, sl) + 2 * hh
                cg, cu = CSR + 8 * p + 2 * hh, CSR + 8 * p + 4 + 2 * hh
                q = CO + 4 * sl
                a(f"v_pk_fma_f32 {vr(g,2)}, {vr(cg,2)}, {vr(q,2)}, {vr(g,2)} {lolo}")
                a(f"v_pk_fma_f32 {vr(u,2)}, {vr(cu,2)}, {vr(q,2)}, {vr(u,2)} {lolo}")
        for k, sl in enumerate(sls):
            for hh in range(2):
                g = acc(p, 0, sl) + 2 * hh
                q = CO + 4 * sl
                a(f"v_pk_mul_f32 {vr(T + 4*k + 2*hh, 2)}, {vr(g,2)}, {vr(q,2)} op_sel:[0,1] op_sel_hi:[1,1]")
        for e in range(8):
            a(f"v_exp_f32 v{T + e}, v{T + e}")
        for k, sl in enumerate(sls):
            for hh in range(2):
                g, u = acc(p, 0, sl) + 2 * hh, acc(p, 1, sl) + 2 * hh
                a(f"v_pk_mul_f32 {vr(g,2)}, {vr(g,2)}, {vr(u,2)}")
        for k, sl in enumerate(sls):
            for hh in range(2):
                t = vr(T + 4 * k + 2 * hh, 2)
                c = vr(CO + 4 * sl + 2, 2)
                a(f"v_pk_fma_f32 {t}, {t}, {c}, {c} op_sel:[0,0,0] op_sel_hi:[1,0,0]")
        for e in range(8):
            a(f"v_rcp_f32 v{T + e}, v{T + e}")
        a("s_nop 0")
        for k, sl in enumerate(sls):
            for hh in range(2):
                g = acc(p, 0, sl) + 2 * hh
                a(f"v_pk_mul_f32 {vr(g,2)}, {vr(g,2)}, {vr(T + 4*k + 2*hh, 2)}")
        for k, sl in enumerate(sls):
            for hh in range(2):
                g = acc(p, 0, sl) + 2 * hh
                a(f"v_cvt_pk_bf16_f32 v{O + 2*k + hh}, v{g}, v{g+1}")
        a("s_nop 1")
        a(f"v_permlane16_swap_b32 v{O}, v{O + 2}")
        a(f"v_permlane16_swap_b32 v{O + 1}, v{O + 3}")
        so, off = ((sU0, sU1)[pi], 1024 * p) if p < 3 else (sU3, 0)
        a(f"buffer_store_dwordx4 {vr(O, 4)}, v{vSO_}, s[{SRD_WS}:{SRD_WS+3}], s{so} offen offset:{off}{pol}")
```

```python
from common import *
from p0 import *
from sync import *
import gemm1
from gemm1 import sRB, sFB, sGI

NLEFT = 6
ROT = int(os.environ.get('ROT', 0))
RSLOT = 28672
LA = 4 * RSLOT
L_HR = LA
L_X2 = LA + 8192
SLOT_KS = list(range(0, 14))
R2_UNITS = list(range(14, 22))
R2_BASE = LA - 8 * 8192

vW2, vL16, vHR = 90, 91, 92
sW2M, sHM = 85, 87
sWB, sHG = 68, 60


def l_setup(a):
    a.c("GEMM2 loader setup")
    a.srd(56, sW2, D * F * 2)
    a(f"""
    v_lshrrev_b32 v8, 3, v1
    v_and_b32 v9, 7, v1
    v_bfe_u32 v10, v1, 4, 1
    v_lshlrev_b32 v10, 1, v10
    v_xor_b32 v10, v9, v10
    s_and_b32 s6, s{sWAVE}, 1
    s_lshl_b32 s6, s6, 2
    v_xor_b32 v10, s6, v10
    v_lshlrev_b32 v11, 10, v8
    v_lshl_add_u32 v11, v10, 4, v11
    s_and_b32 s7, s{sFB}, 7              ; dc
    s_lshl_b32 s8, s7, 7
    s_lshl_b32 s9, s{sWAVE}, 13
    s_add_u32 s8, s8, s9
    v_add_u32 v{vW2}, s8, v11
    s_lshl_b32 s{sW2M}, s{sWAVE}, 10
    v_lshlrev_b32 v{vL16}, 4, v1
    v_bfe_u32 v10, v1, 4, 2
    v_lshlrev_b32 v10, 1, v10
    v_xor_b32 v10, v9, v10
    v_mul_u32_u24 v11, {RS}, v8
    v_lshl_add_u32 v11, v10, 4, v11
    s_lshl_b32 s8, s7, 6
    s_lshl_b32 s9, s{sWAVE}, 4
    s_add_u32 s8, s8, s9
    s_mul_i32 s8, s8, {RS}
    s_lshr_b32 s9, s{sFB}, 3             ; th
    s_lshl_b32 s10, s{sRB}, 8
    s_add_u32 s8, s8, s10
    s_lshl_b32 s10, s9, 7
    s_add_u32 s8, s8, s10
    s_add_u32 s8, s8, {WS_HT}
    v_add_u32 v{vHR}, s8, v11
    s_lshl_b32 s8, s{sRB}, 4
    s_lshr_b32 s10, s{sWAVE}, 1
    s_lshl_b32 s10, s10, 3
    s_add_u32 s8, s8, s10
    s_mul_i32 s8, s8, 28672
    s_mul_i32 s10, s9, 14336
    s_add_u32 s8, s8, s10
    s_and_b32 s10, s{sWAVE}, 1
    s_mul_i32 s10, s10, 7168
    s_add_u32 s8, s8, s10
    s_add_u32 s8, s8, {WS_H}
    s_mul_i32 s{sHM}, s{sWAVE}, 7168
    """)
    for c in range(4):
        a(f"""
        s_and_b32 s10, s{sFB}, {ROT}
        s_lshl_b32 s10, s10, {1 if ROT == 1 else 0}
        s_add_u32 s10, s10, {c}
        s_and_b32 s10, s10, 3
        s_mul_i32 s{sWB + c}, s10, {224 * 1024}
        s_mul_i32 s10, s10, {2 * 28672}
        s_add_u32 s{sHG + c}, s8, s10
        """)


def w2_dma(a, ks, lds):
    for kh in range(2):
        a(f"s_add_u32 m0, s{sW2M}, {lds + 4096 * kh}")
        c, r = divmod(ks, 7)
        a(f"s_add_u32 s8, s{sWB + c}, {(896 * kh + 32 * r) * 1024}")
        a(f"buffer_load_dwordx4 v{vW2}, s[56:59], s8 offen{W2NT} lds")


def h_dma(a, s):
    slot = (s % 4) * RSLOT
    for part, cnt in ((0, 4), (4096, 3)):
        a(f"s_add_u32 m0, s{sHM}, {slot + part}")
        a(f"s_add_u32 s8, s{sHG + (s >> 1)}, {(s & 1) * 28672 + part}")
        for j in range(cnt):
            a(f"buffer_load_dwordx4 v{vL16}, s[{SRD_WS}:{SRD_WS+3}], s8 offen offset:{1024*j} {os.environ.get('H2POL', 'sc1')} lds")


ROUND1 = [([4], []), ([5, 6, 7], [1, 2]), ([8, 9, 10, 11], [3, 4]), ([0, 1, 2, 3, 12, 13], [0])]


def l_round1(a, part):
    res, left = ROUND1[part]
    for i in res:
        w2_dma(a, SLOT_KS[i], 8192 * i)
    for i in left:
        w2_dma(a, 22 + i, LA + 8192 * i)
    return 2 * (len(res) + len(left))


def l_main(a, only_wave):
    a.c("GEMM2 loader: rest of w2")
    l_round1(a, 3)
    a("s_waitcnt vmcnt(0)")
    Stamps.put(a, "L", "w2_r1")
    a("s_barrier")
    a("s_barrier")
    for i, ks in enumerate(R2_UNITS):
        w2_dma(a, ks, R2_BASE + 8192 * i)
    w2_dma(a, 27, LA + 8192 * (NLEFT - 1))
    a("s_waitcnt vmcnt(0)")
    Stamps.put(a, "L", "w2_r2")
    a("s_barrier")

    def both():
        a(f"s_lshl_b32 s10, s{sRB}, 4")
        poll(a, F3, 16, 1, 8, first_sgpr=10)
    only_wave(a, 0, both)
    Stamps.put(a, "L", "sync3")
    a("s_barrier")
    Stamps.put(a, "L", "g:G13")
    h_dma(a, 0)
    for s in range(8):
        n = 0
        if s < 7:
            h_dma(a, s + 1)
            n = 7
        if s == 6:
            a(f"s_lshl_b32 s9, s{sWAVE}, 11")
            a(f"s_add_u32 m0, s9, {L_HR}")
            a("s_nop 0")
            a(f"buffer_load_dwordx4 v{vHR}, s[{SRD_WS}:{SRD_WS+3}], 0 offen sc1 lds")
            a(f"s_add_u32 m0, s9, {L_HR + 1024}")
            a(f"s_mov_b32 s8, {8 * RS}")
            a(f"buffer_load_dwordx4 v{vHR}, s[{SRD_WS}:{SRD_WS+3}], s8 offen sc1 lds")
            n = 9
        a(f"s_waitcnt vmcnt({n})")
        Stamps.put(a, "L", f"g:s{s}")
        a("s_barrier")
    a("s_barrier")


W2R = 80
ACC = 8
HF = (40, 56)
W2T = 72
vB0, vB1, vSt0, vSt1, vWa, vWb = 0, 1, 2, 3, 4, 5
sKH, sDH = 86, 87


def w2reg(ks, db):
    return W2R + 8 * (ks % 22) + 4 * db


def w2_reads(ks, off):
    out = []
    for db in range(2):
        r = w2reg(ks, db)
        out.append(f"ds_read_b64_tr_b16 {vr(r,2)}, v{vWa + db} offset:{off}")
        out.append(f"ds_read_b64_tr_b16 {vr(r+2,2)}, v{vWa + db} offset:{off + 512}")
    return out


def h_reads(j):
    c, r = divmod(j, 7)
    hi = c & 1
    if r < 3:
        ad, off = (vB0, vB1)[hi], 2048 * r
    elif r == 3:
        ad, off = (vSt0, vSt1)[hi], 0
    else:
        ad, off = (vB0, vB1)[hi], RSLOT + 1024 + 2048 * (r - 4)
    return [f"ds_read_b128 {vr(HF[j & 1] + 4*tb, 4)}, v{ad} offset:{off + 7168*(tb >> 1) + 256*(tb & 1)}" for tb in range(4)]


def lane_id(a, v):
    a(f"v_mbcnt_lo_u32_b32 v{v}, -1, 0")
    a(f"v_mbcnt_hi_u32_b32 v{v}, -1, v{v}")


vEa = 15


def m_w2_addresses(a):
    a(f"""
    s_and_b32 s{sKH}, s4, 1
    s_lshr_b32 s{sDH}, s4, 1
    v_lshrrev_b32 v16, 4, v1             ; g
    v_bfe_u32 v17, v1, 2, 2
    v_lshl_add_u32 v17, v16, 3, v17      ; row = 8 g + (i >> 2)
    v_lshlrev_b32 v17, 7, v17
    v_and_b32 v18, 3, v1
    v_lshl_add_u32 v17, v18, 3, v17
    v_bfe_u32 v18, v1, 3, 2
    s_lshl_b32 s6, s{sDH}, 1
    v_xor_b32 v18, s6, v18
    s_lshl_b32 s7, s{sKH}, 12
    v_add_u32 v17, s7, v17
    v_lshl_add_u32 v{vEa}, v18, 5, v17
    """)


def m_main(a, only_wave):
    a.c("GEMM2 matrix-wave setup")
    now = SLOT_KS
    a("v_mov_b32 v7, v1")
    a(f"""
    v_mov_b32 v{vWa}, v{vEa}
    v_xor_b32 v{vWb}, 32, v{vEa}
    s_barrier
    """)
    a.c("GEMM2: w2 -> registers")
    for i, ks in enumerate(now):
        if i == 7:
            a(f"v_add_u32 v{vWa}, {7 * 8192}, v{vWa}")
            a(f"v_add_u32 v{vWb}, {7 * 8192}, v{vWb}")
        for ln in w2_reads(ks, 8192 * (i % 7)):
            a(ln)
    a(f"""
    v_lshrrev_b32 v40, 4, v7             ; g
    v_and_b32 v41, 15, v7                ; i
    v_lshlrev_b32 v42, 4, v41
    v_lshl_add_u32 v42, v40, 9, v42
    s_mul_i32 s7, s{sKH}, 14336
    v_add_u32 v{vB0}, s7, v42
    v_add_u32 v{vB1}, {2 * RSLOT}, v{vB0}
    v_mov_b32 v43, 6144
    v_mov_b32 v44, {RSLOT - 1024}
    v_cmp_gt_u32 vcc, 32, v7
    s_nop 1
    v_cndmask_b32 v43, v44, v43, vcc
    v_add_u32 v{vSt0}, v43, v{vB0}
    v_add_u32 v{vSt1}, v43, v{vB1}
    s_waitcnt vmcnt(0)
    """)
    Stamps.put(a, "M", "H_stored")
    arrive_post(a, L_CNT + 44, 4, F3, sGI, 40)
    a("s_waitcnt lgkmcnt(0)")
    a("s_barrier")
    a(f"v_subrev_u32 v{vWa}, {7 * 8192 - R2_BASE}, v{vWa}")
    a(f"v_subrev_u32 v{vWb}, {7 * 8192 - R2_BASE}, v{vWb}")
    a("s_barrier")
    for i, ks in enumerate(R2_UNITS):
        for ln in w2_reads(ks, 8192 * i):
            a(ln)
    a(f"v_add_u32 v{vWa}, {LA - R2_BASE}, v{vWa}")
    a(f"v_add_u32 v{vWb}, {LA - R2_BASE}, v{vWb}")
    m_epilogue_setup(a)
    a("s_waitcnt lgkmcnt(0)")
    a("s_barrier")
    a.c("GEMM2 main loop")
    a("s_barrier")
    Stamps.put(a, "M", "K0")
    for ln in h_reads(0):
        a(ln)
    for j in range(28):
        a(f"s_waitcnt lgkmcnt({4 if 7 <= j <= 12 else 0})")
        if (j + 1) % 7 in (0, 3) and j < 27:
            Stamps.put(a, "M", f"g:j{j}")
            a("s_barrier")
        mf = []
        for db in range(2):
            for tb in range(4):
                d = vr(ACC + 16 * db + 4 * tb, 4)
                c = "0" if j == 0 else d
                mf.append(f"v_mfma_f32_16x16x32_bf16 {d}, {vr(w2reg(j, db), 4)}, {vr(HF[j & 1] + 4*tb, 4)}, {c}")
        rd = h_reads(j + 1) if j < 27 else []
        if j == 26:
            rd = rd + [f"v_mov_b32 v{vX1}, v72", f"v_mov_b32 v{vX2}, v73", f"v_mov_b32 v{vR0}, v74\nv_mov_b32 v{vR0 + 1}, v75", f"v_mov_b32 v{vOUT}, v76"]
        if 6 <= j < 12:
            rd = rd + w2_reads(16 + j, 8192 * (j - 6))
        if j == 27:
            rd = [f"ds_read_b64_tr_b16 {vr(72 + 4*db + 2*t, 2)}, v{vR0 + t} offset:{2048 * db}" for t in range(2) for db in range(2)]
        seq = interleave(mf, rd, 0, min(8, len(rd)) or 1)
        for ln in seq:
            a(ln)
    Stamps.put(a, "M", "g2_loop")
    Stamps.put(a, "M", "g:loop")
    m_epilogue(a)


vX1, vX2, vR0, vOUT = 4, 5, 6, 0


def m_epilogue_setup(a):
    a.srd(56, sOUT, S * D * 2)
    a(f"""
    v_lshlrev_b32 v40, 4, v7
    s_lshl_b32 s6, s4, 12
    s_add_u32 s6, s6, {L_X2}
    v_add_u32 v72, s6, v40
    v_xor_b32 v73, 4096, v72
    v_lshrrev_b32 v41, 2, v7
    v_lshlrev_b32 v41, 7, v41
    v_and_b32 v42, 3, v7
    v_lshl_add_u32 v41, v42, 3, v41
    v_bfe_u32 v42, v7, 3, 2
    s_lshl_b32 s6, s{sKH}, 1
    v_xor_b32 v42, s6, v42
    s_lshl_b32 s7, s{sDH}, 12
    s_add_u32 s7, s7, {L_HR}
    v_add_u32 v41, s7, v41
    v_lshl_add_u32 v74, v42, 5, v41
    v_xor_b32 v75, 32, v74
    v_and_b32 v41, 15, v7
    v_lshlrev_b32 v41, 10, v41
    v_bfe_u32 v42, v7, 4, 1
    v_lshl_add_u32 v41, v42, 5, v41
    v_lshrrev_b32 v42, 5, v7
    v_lshl_add_u32 v76, v42, 4, v41
    s_lshl_b32 s8, s{sRB}, 7
    s_lshr_b32 s7, s{sFB}, 3
    s_lshl_b32 s7, s7, 6
    s_add_u32 s8, s8, s7
    s_lshl_b32 s7, s{sKH}, 5
    s_add_u32 s8, s8, s7
    s_lshl_b32 s8, s8, 10
    s_and_b32 s7, s{sFB}, 7
    s_lshl_b32 s7, s7, 7
    s_add_u32 s8, s8, s7
    s_lshl_b32 s7, s{sDH}, 6
    s_add_u32 s8, s8, s7
    s_add_u32 s9, s8, 16384
    """)


def m_epilogue(a):
    a.c("GEMM2: exchange the K halves, add the residual, store")
    lab = a.label("x2")
    a(f"""
    s_cmp_eq_u32 s{sKH}, 0
    s_nop 5
    s_cbranch_scc1 {lab}_k0
    """)
    for db in range(2):
        for t in range(2):
            a(f"ds_write_b128 v{vX1}, {vr(ACC + 16*db + 4*t, 4)} offset:{1024 * (2*db + t)}")
    a("s_nop 1")
    for db in range(2):
        for i in range(8):
            a(f"v_mov_b32 v{ACC + 16*db + i}, v{ACC + 16*db + 8 + i}")
    a(f"s_branch {lab}_done")
    a(f"{lab}_k0:")
    for db in range(2):
        for t in range(2):
            a(f"ds_write_b128 v{vX1}, {vr(ACC + 16*db + 8 + 4*t, 4)} offset:{1024 * (2*db + t)}")
    a(f"{lab}_done:")
    P, HR, U, O = 40, 72, 56, 80
    a("s_waitcnt lgkmcnt(4)")
    for t in range(2):
        for db in range(2):
            c, hr, u = ACC + 16 * db + 4 * t, HR + 4 * db + 2 * t, U + 8 * t + 4 * db
            a(f"v_lshlrev_b32 v{u}, 16, v{hr}")
            a(f"v_and_b32 v{u+1}, s{sMASK}, v{hr}")
            a(f"v_lshlrev_b32 v{u+2}, 16, v{hr+1}")
            a(f"v_and_b32 v{u+3}, s{sMASK}, v{hr+1}")
            for hh in range(2):
                a(f"v_pk_add_f32 {vr(c+2*hh,2)}, {vr(c+2*hh,2)}, {vr(u+2*hh,2)}")
    a("s_waitcnt lgkmcnt(0)")
    a("s_barrier")
    for t in range(2):
        for db in range(2):
            a(f"ds_read_b128 {vr(P + 8*db + 4*t, 4)}, v{vX2} offset:{1024 * (2*db + t)}")
    for t in range(2):
        a(f"s_waitcnt lgkmcnt({2 - 2*t})")
        for db in range(2):
            c, p = ACC + 16 * db + 4 * t, P + 8 * db + 4 * t
            for hh in range(2):
                a(f"v_pk_add_f32 {vr(c+2*hh,2)}, {vr(c+2*hh,2)}, {vr(p+2*hh,2)}")
        for db in range(2):
            c = ACC + 16 * db + 4 * t
            for hh in range(2):
                a(f"v_cvt_pk_bf16_f32 v{O + 4*t + 2*db + hh}, v{c+2*hh}, v{c+2*hh+1}")
        a("s_nop 1")
        a(f"v_permlane16_swap_b32 v{O + 4*t}, v{O + 4*t + 2}")
        a(f"v_permlane16_swap_b32 v{O + 4*t + 1}, v{O + 4*t + 3}")
        a(f"buffer_store_dwordx4 {vr(O + 4*t, 4)}, v{vOUT}, s[56:59], s{8 + t} offen")
```

```python
from common import *
from sync import *
import os
WNT = ' nt' if 'w' in os.environ.get('NT', '') else ''
KNT = '' if os.environ.get('KPLAIN') else ' nt'
HNT = '' if os.environ.get('KPLAIN') or os.environ.get('HPLAIN') else ' nt'
CNT = ' nt' if 'c' in os.environ.get('NT', '') else ''
W2NT = ' nt' if '2' in os.environ.get('NT', '') else ''

LW = 0
LH = 100352
LMISC = 157696
L_T1 = LH
L_T2 = LH + 8192
L_CNT = LMISC + 4032
L_CSP = LMISC + 2560
L_R = LH + 17408
L_ST = L_R + 9216
L_SH = L_ST
L_EX = LH
L_XR = L_ST + 16384
L_KC = L_ST + 16384

sMASK = 64
sSELLO, sSELHI = 65, 66


def l_tile_issue(a):
    a.c("P0 tile loads")
    a.srd(60, sSH, D * 8)
    a(f"""
    s_and_b32 s4, s2, 7                  ; g
    s_lshl_b32 s6, s4, 9
    v_and_b32 v7, 63, v0
    v_lshlrev_b32 v44, 3, v7
    buffer_load_dwordx2 v[46:47], v44, s[60:63], s6 offen nt
    """)
    a.srd(48, sK, S * D * 2)
    a(f"""
    s_lshr_b32 s5, s2, 3                 ; tt
    s_lshl_b32 s6, s5, 16                ; t0*1024
    s_lshl_b32 s7, s4, 7                 ; 128 g
    s_add_u32 s6, s6, s7
    v_and_b32 v1, 7, v0                  ; cg
    v_lshrrev_b32 v2, 3, v0              ; rp
    v_lshlrev_b32 v3, 11, v2
    v_lshl_add_u32 v3, v1, 4, v3
    v_add_u32 v3, s6, v3
    """)
    pass
    a(f"""
    buffer_load_dwordx4 v[20:23], v3, s[48:51], 0 offen{KNT}
    buffer_load_dwordx4 v[24:27], v3, s[48:51], 0 offen offset:1024{KNT}
    """)
    a.srd(52, sV, S * D * 2)
    a(f"""
    buffer_load_dwordx4 v[28:31], v3, s[52:55], 0 offen nt
    buffer_load_dwordx4 v[32:35], v3, s[52:55], 0 offen offset:1024 nt
    v_subrev_u32 v4, 3072, v3
    v_subrev_u32 v5, 2048, v3
    v_subrev_u32 v6, 1024, v3
    buffer_load_dwordx4 v[16:19], v6, s[48:51], 0 offen{HNT}
    buffer_load_dwordx4 v[12:15], v5, s[48:51], 0 offen{HNT}
    buffer_load_dwordx4 v[8:11], v4, s[48:51], 0 offen{HNT}
    """)


XLATE = bool(os.environ.get("XLATE"))


def l_x_issue(a):
    a("buffer_load_dwordx4 v[36:39], v3, s[56:59], 0 offen nt")
    a("buffer_load_dwordx4 v[40:43], v3, s[56:59], 0 offen offset:1024 nt")


def l_tile_setup(a):
    a.srd(56, sX, S * D * 2)
    if not XLATE:
        l_x_issue(a)
    a.c("LDS write bases and read-back / store offsets")
    a(f"""
    v_lshlrev_b32 v60, 2, v1             ; 4 cg
    v_sub_u32 v61, 31, v2
    v_xor_b32 v61, v61, v60
    v_xor_b32 v62, v2, v60
    v_lshlrev_b32 v63, 10, v1
    v_lshl_add_u32 v61, v61, 2, v63
    v_lshl_add_u32 v62, v62, 2, v63
    v_add_u32 v61, {L_T1}, v61
    v_add_u32 v62, {L_T2}, v62
    v_lshrrev_b32 v63, 6, v0
    v_xor_b32 v63, v63, v1               ; j ^ (d>>3)
    v_lshlrev_b32 v63, 4, v63
    v_lshl_add_u32 v63, v2, 7, v63       ; d*128 + 16*(j^(d>>3))
    v_add_u32 v63, {L_T1}, v63
    v_xor_b32 v64, 64, v63
    v_add_u32 v64, 4096, v64             ; rows d+32
    s_lshl_b32 s7, s4, 6
    v_add_u32 v65, s7, v2                ; channel 64g + d
    s_movk_i32 s8, {RS}
    v_mul_lo_u32 v65, v65, s8
    v_lshl_add_u32 v65, v1, 4, v65       ; + 16 j
    s_lshl_b32 s9, s5, 7                 ; t0*2
    s_sub_u32 s10, {WS_KVR + 3968}, s9
    s_add_u32 s11, s10, {32 * RS}
    s_add_u32 s12, s9, {WS_XT}
    s_add_u32 s13, s12, {32 * RS}
    """)


def l_tile_compute(a):
    a.c("P0 tile compute")
    a(f"""
    s_mul_i32 s6, s{sWAVE}, 1152
    s_add_u32 s6, s6, {L_SH}
    v_lshrrev_b32 v44, 3, v7
    v_mul_u32_u24 v44, 144, v44
    v_bfe_u32 v45, v7, 1, 2
    v_lshl_add_u32 v44, v45, 5, v44
    v_and_b32 v45, 1, v7
    v_lshl_add_u32 v44, v45, 2, v44
    v_add_u32 v44, s6, v44
    v_mul_u32_u24 v7, 144, v1
    v_add_u32 v7, s6, v7
    s_waitcnt vmcnt(9)
    v_lshlrev_b32 v48, 16, v46
    v_and_b32 v49, s{sMASK}, v46
    v_lshlrev_b32 v50, 16, v47
    v_and_b32 v51, s{sMASK}, v47
    ds_write2_b32 v44, v48, v49 offset0:0 offset1:2
    ds_write2_b32 v44, v50, v51 offset0:4 offset1:6
    """)
    for i in range(8):
        a(f"ds_read_b128 {vr(112 + 4*i, 4)}, v7 offset:{16*i}")
    a("s_waitcnt vmcnt(2) lgkmcnt(0)")
    Stamps.put(a, "L", "tile_landed")
    KU, VU, A_, B_, O = 76, 86, 90, 92, 94
    for q in range(4):
        W = 112 + 8 * q
        for j in range(5):
            a(f"v_lshlrev_b32 v{KU + 2 * j}, 16, v{8 + 4 * j + q}")
            a(f"v_and_b32 v{KU + 2 * j + 1}, s{sMASK}, v{8 + 4 * j + q}")
        for j in range(2):
            a(f"v_lshlrev_b32 v{VU + 2 * j}, 16, v{28 + 4 * j + q}")
            a(f"v_and_b32 v{VU + 2 * j + 1}, s{sMASK}, v{28 + 4 * j + q}")
        k = lambda j: vr(KU + 2 * j, 2)
        w = lambda j: vr(W + 2 * j, 2)
        a(f"v_pk_mul_f32 {vr(A_,2)}, {w(3)}, {k(0)}")
        a(f"v_pk_mul_f32 {vr(B_,2)}, {w(3)}, {k(1)}")
        for tap in (2, 1, 0):
            a(f"v_pk_fma_f32 {vr(A_,2)}, {w(tap)}, {k(3 - tap)}, {vr(A_,2)}")
            a(f"v_pk_fma_f32 {vr(B_,2)}, {w(tap)}, {k(4 - tap)}, {vr(B_,2)}")
        a(f"v_pk_mul_f32 {vr(A_,2)}, {vr(A_,2)}, {vr(VU,2)}")
        a(f"v_pk_mul_f32 {vr(B_,2)}, {vr(B_,2)}, {vr(VU+2,2)}")
        o = O + 2 * q
        a(f"v_cvt_pk_bf16_f32 v{o}, v{B_}, v{A_}")
        a(f"v_cvt_pk_bf16_f32 v{o+1}, v{B_+1}, v{A_+1}")
        a(f"ds_write2_b32 v61, v{o}, v{o+1} offset0:{64*q} offset1:{64*q+32}")
    a("s_waitcnt lgkmcnt(0)")


def l_kv_store(a):
    a.c("P0: kv read-back and stores, x tile -> LDS")
    a(f"""
    ds_read_b128 v[8:11], v63
    ds_read_b128 v[12:15], v64
    s_waitcnt lgkmcnt(1)
    buffer_store_dwordx4 v[8:11], v65, s[{SRD_WS}:{SRD_WS+3}], s10 offen
    s_waitcnt lgkmcnt(0)
    buffer_store_dwordx4 v[12:15], v65, s[{SRD_WS}:{SRD_WS+3}], s11 offen
    s_waitcnt vmcnt(2)
    """)
    for q in range(4):
        o = 102 + 2 * q
        a(f"v_perm_b32 v{o}, v{40+q}, v{36+q}, s{sSELLO}")
        a(f"v_perm_b32 v{o+1}, v{40+q}, v{36+q}, s{sSELHI}")
        a(f"ds_write2_b32 v62, v{o}, v{o+1} offset0:{64*q} offset1:{64*q+32}")
    a("s_waitcnt vmcnt(0) lgkmcnt(0)")


def l_x_store(a):
    a(f"""
    ds_read_b128 v[16:19], v63 offset:8192
    ds_read_b128 v[20:23], v64 offset:8192
    s_waitcnt lgkmcnt(1)
    buffer_store_dwordx4 v[16:19], v65, s[{SRD_WS}:{SRD_WS+3}], s12 offen
    s_waitcnt lgkmcnt(0)
    buffer_store_dwordx4 v[20:23], v65, s[{SRD_WS}:{SRD_WS+3}], s13 offen
    """)


def l0_republish(a):
    lab = a.label("rp")
    a(f"""
    s_lshr_b32 s6, s2, 3
    s_lshl_b32 s6, s6, 7                 ; t0 * 2
    s_sub_u32 s7, {WS_G + WS_KVR + 3968}, s6
    s_add_u32 s6, s6, {WS_G + WS_XT}
    v_mov_b32 v24, v63
    s_mov_b32 s8, 0
    {lab}:
    s_lshl_b32 s9, s8, 4
    v_xor_b32 v25, s9, v24
    ds_read_b128 v[16:19], v25
    ds_read_b128 v[20:23], v25 offset:8192
    s_waitcnt lgkmcnt(0)
    buffer_store_dwordx4 v[16:19], v65, s[{SRD_WS}:{SRD_WS+3}], s7 offen sc1
    buffer_store_dwordx4 v[20:23], v65, s[{SRD_WS}:{SRD_WS+3}], s6 offen sc1
    s_waitcnt vmcnt(0)
    v_add_u32 v24, 1024, v24
    s_add_u32 s6, s6, {8 * RS}
    s_add_u32 s7, s7, {8 * RS}
    s_add_u32 s8, s8, 1
    s_cmp_lt_u32 s8, 8
    s_cbranch_scc1 {lab}
    """)


def m_stats_issue(a):
    a.c("LN1 stats: two rows per wave, 32 lanes per row")
    a.srd(56, sX, S * D * 2)
    a(f"""
    s_lshl_b32 s5, s2, 3
    s_lshl_b32 s6, s4, 1
    s_add_u32 s5, s5, s6
    v_lshrrev_b32 v2, 5, v1
    v_add_u32 v2, s5, v2                 ; row
    v_and_b32 v3, 31, v1
    v_lshlrev_b32 v3, 5, v3
    v_lshl_add_u32 v3, v2, 10, v3
    buffer_load_dwordx4 v[16:19], v3, s[56:59], 0 offen nt
    buffer_load_dwordx4 v[20:23], v3, s[56:59], 0 offen offset:16 nt
    v_lshlrev_b32 v4, 3, v2
    v_add_u32 v4, {WS_ST1}, v4
    """)


def dpp_add(a, reg, ctrl):
    a(f"v_add_f32_dpp v{reg}, v{reg}, v{reg} {ctrl}")


def m_stats_finish(a, vm):
    a(f"s_waitcnt vmcnt({vm})")
    for i in range(8):
        a(f"v_lshlrev_b32 v{24+2*i}, 16, v{16+i}")
        a(f"v_and_b32 v{25+2*i}, s{sMASK}, v{16+i}")
    a("v_pk_mul_f32 v[42:43], v[24:25], v[24:25]")
    a("v_pk_add_f32 v[40:41], v[24:25], v[26:27]")
    a("v_pk_fma_f32 v[42:43], v[26:27], v[26:27], v[42:43]")
    for i in range(2, 8):
        a(f"v_pk_add_f32 v[40:41], v[40:41], {vr(24+2*i,2)}")
        a(f"v_pk_fma_f32 v[42:43], {vr(24+2*i,2)}, {vr(24+2*i,2)}, v[42:43]")
    a("v_add_f32 v40, v40, v41")
    a("v_add_f32 v41, v42, v43")
    for ctrl in ("quad_perm:[1,0,3,2] row_mask:0xf bank_mask:0xf", "quad_perm:[2,3,0,1] row_mask:0xf bank_mask:0xf",
                 "row_half_mirror row_mask:0xf bank_mask:0xf", "row_mirror row_mask:0xf bank_mask:0xf",
                 "row_bcast:15 row_mask:0xa bank_mask:0xf"):
        a("s_nop 1")
        dpp_add(a, 40, ctrl)
        dpp_add(a, 41, ctrl)
    a(f"""
    v_mul_f32 v40, 0x3b000000, v40       ; mean = S1/512
    v_mul_f32 v41, 0x3b000000, v41
    v_fma_f32 v41, -v40, v40, v41        ; var
    v_max_f32 v41, 0, v41
    v_add_f32 v41, 0x3727c5ac, v41       ; + 1e-5
    v_rsq_f32 v41, v41
    s_mov_b32 s6, 0x00010000
    s_mov_b32 s7, 0x00010000
    s_mov_b64 exec, s[6:7]
    buffer_store_dwordx2 v[40:41], v4, s[{SRD_WS}:{SRD_WS+3}], 0 offen sc1
    s_mov_b64 exec, -1
    """)


sCSB = 67


def cs_block(a):
    a(f"""
    s_bfe_u32 s6, s2, 0x20001            ; (wg & 7) >> 1
    s_mul_i32 s6, s6, 28
    s_lshr_b32 s7, s2, 3
    s_add_u32 s6, s6, s7
    s_cmp_ge_u32 s6, 56
    s_cselect_b32 s8, 56, 0
    s_add_u32 s6, s6, s8
    s_and_b32 s8, s2, 1
    s_mul_i32 s8, s8, 56
    s_add_u32 s6, s6, s8
    s_cmp_lt_u32 s7, 28
    s_cselect_b32 s{sCSB}, s6, 224
    """)


def cs_issue(a):
    a.c("column-sum loads")
    cs_block(a)
    a(f"""
    s_lshr_b32 s8, s{sCSB}, 2
    s_cmp_lt_u32 s8, 28
    s_cselect_b32 s60, s{sW1}, s{sW3}
    s_cselect_b32 s61, s{sW1+1}, s{sW3+1}
    s_cselect_b32 s6, 0, 28
    s_sub_u32 s6, s8, s6
    s_cmp_lt_u32 s{sCSB}, 224
    s_cselect_b32 s62, {D * F * 2}, 0
    s_mov_b32 s63, 0x00020000
    s_lshl_b32 s6, s6, 7
    s_and_b32 s7, s{sCSB}, 3
    s_lshl_b32 s7, s7, 2
    s_add_u32 s7, s7, s4
    s_mul_i32 s7, s7, {32 * F * 2}
    s_add_u32 s6, s6, s7
    v_lshrrev_b32 v5, 3, v1
    v_mul_u32_u24 v5, {F * 2}, v5
    v_and_b32 v6, 7, v1
    v_lshl_add_u32 v5, v6, 4, v5
    s_add_u32 s7, s6, {8 * F * 2}
    s_add_u32 s8, s6, {16 * F * 2}
    s_add_u32 s9, s6, {24 * F * 2}
    buffer_load_dwordx4 v[48:51], v5, s[60:63], s6 offen{CNT}
    buffer_load_dwordx4 v[52:55], v5, s[60:63], s7 offen{CNT}
    buffer_load_dwordx4 v[56:59], v5, s[60:63], s8 offen{CNT}
    buffer_load_dwordx4 v[60:63], v5, s[60:63], s9 offen{CNT}
    """)


def cs_partial(a):
    a.c("column-sum partials")
    for q in range(4):
        a(f"v_lshlrev_b32 v{64+2*q}, 16, v{48+q}")
        a(f"v_and_b32 v{65+2*q}, s{sMASK}, v{48+q}")
    for i in range(1, 4):
        for q in range(4):
            a(f"v_lshlrev_b32 v{72+2*q}, 16, v{48+4*i+q}")
            a(f"v_and_b32 v{73+2*q}, s{sMASK}, v{48+4*i+q}")
        for q in range(4):
            a(f"v_pk_add_f32 {vr(64+2*q,2)}, {vr(64+2*q,2)}, {vr(72+2*q,2)}")
    a("s_nop 1")
    for c in range(8):
        dpp_add(a, 64 + c, "row_ror:8 row_mask:0xf bank_mask:0xf")
    a("s_nop 1")
    for e in range(4):
        a(f"v_permlane32_swap_b32 v{64+e}, v{68+e}")
    a("s_nop 1")
    for e in range(4):
        a(f"v_add_f32 v{64+e}, v{64+e}, v{68+e}")
    a("s_nop 1")
    for e in range(2):
        a(f"v_permlane16_swap_b32 v{64+e}, v{66+e}")
    a(f"""
    v_lshrrev_b32 v5, 4, v1
    v_lshlrev_b32 v5, 3, v5
    v_and_b32 v6, 7, v1
    v_lshl_add_u32 v5, v6, 5, v5
    s_lshl_b32 s6, s4, 8
    s_add_u32 s6, s6, {L_CSP}
    v_add_u32 v5, s6, v5
    v_add_f32 v64, v64, v66
    v_add_f32 v65, v65, v67
    ds_write_b64 v5, v[64:65]
    """)


def l_cs_final(a):
    a.c("column sums: final reduction")
    cs_block(a)
    a(f"""
    v_lshlrev_b32 v9, 2, v1
    v_add_u32 v8, {L_CSP}, v9
    """)
    for i in range(4):
        a(f"ds_read_b32 v{48+i}, v8 offset:{256*i}")
    a(f"""
    s_and_b32 s6, s{sCSB}, 3
    s_mul_i32 s6, s6, {2 * F * 4}
    s_lshr_b32 s7, s{sCSB}, 2
    s_lshl_b32 s7, s7, 8
    s_add_u32 s6, s6, s7
    s_add_u32 s6, s6, {WS_CS}
    s_cmp_lt_u32 s{sCSB}, 224
    s_cselect_b32 s6, s6, {WS_SIZE}
    s_waitcnt lgkmcnt(0)
    """)
    for step in (2, 1):
        for i in range(step):
            a(f"v_add_f32 v{48+i}, v{48+i}, v{48+i+step}")
    a(f"buffer_store_dword v48, v9, s[{SRD_WS}:{SRD_WS+3}], s6 offen sc1")


def m_touch_w2(a):
    a.c("w2 -> last-level cache")
    a.srd(52, sW2, D * F * 2)
    a(f"""
    s_mul_i32 s6, s2, 7168
    s_mul_i32 s7, s4, 1792
    s_add_u32 s6, s6, s7
    v_min_u32 v13, 13, v1
    v_lshlrev_b32 v13, 7, v13
    buffer_load_dword v252, v13, s[52:55], s6 offen
    """)


def m_x_store0(a):
    a(f"""
    v_and_b32 v13, 7, v1
    v_lshrrev_b32 v14, 3, v1
    v_lshlrev_b32 v13, 4, v13
    v_lshl_add_u32 v15, v14, 7, v13
    v_add_u32 v15, {L_T2}, v15
    ds_read_b128 v[80:83], v15
    v_xor_b32 v15, 64, v15
    ds_read_b128 v[84:87], v15 offset:4096
    s_and_b32 s6, s2, 7
    s_lshl_b32 s6, s6, 6
    v_add_u32 v14, s6, v14
    v_mul_u32_u24 v14, {RS}, v14
    v_add_u32 v14, v14, v13
    s_lshr_b32 s6, s2, 3
    s_lshl_b32 s6, s6, 7
    s_add_u32 s6, s6, {WS_XT}
    s_add_u32 s7, s6, {32 * RS}
    """)
    a(f"""
    s_waitcnt lgkmcnt(0)
    buffer_store_dwordx4 v[80:83], v14, s[{SRD_WS}:{SRD_WS+3}], s6 offen
    buffer_store_dwordx4 v[84:87], v14, s[{SRD_WS}:{SRD_WS+3}], s7 offen
    """)


def touch_code(a):
    lab = a.label("tc")
    a.c("code -> L2")
    a(f"""
    s_lshr_b32 s6, s2, 3
    s_cmp_ge_u32 s6, (L_end-L_begin+8191)/8192
    s_cbranch_scc1 {lab}
    s_getpc_b64 s[52:53]
    {lab}_pc:
    s_sub_u32 s52, s52, {lab}_pc-L_begin
    s_subb_u32 s53, s53, 0
    s_mov_b32 s54, L_end-L_begin
    s_mov_b32 s55, 0x00020000
    s_lshl_b32 s6, s6, 13
    v_lshlrev_b32 v13, 7, v1
    buffer_load_dword v10, v13, s[52:55], s6 offen
    {lab}:
    """)


def touch_pages(a, vlane_src):
    a.c("one word of every buffer")
    ptrs = [sK, sV, sSH, sX, sSK, sWS, sW1, sW3]
    a(f"v_mov_b32 v120, s{ptrs[0]}")
    a(f"v_mov_b32 v121, s{ptrs[0]+1}")
    for i, p in enumerate(ptrs[1:], 1):
        a(f"v_writelane_b32 v120, s{p}, {4 * i}")
        a(f"v_writelane_b32 v121, s{p+1}, {4 * i}")
    a("global_load_dword v122, v[120:121], off nt")


def m_touch_dest(a):
    a.c("destination lines -> L2")
    a(f"""
    s_and_b32 s6, s2, 7
    s_lshl_b32 s6, s6, 2
    s_add_u32 s6, s6, s4
    s_mul_i32 s6, s6, {16 * RS}
    s_lshr_b32 s7, s2, 3
    s_lshl_b32 s7, s7, 7
    s_sub_u32 s8, {WS_KVR + 3968}, s7
    s_add_u32 s7, s7, {WS_XT}
    v_and_b32 v13, 15, v1
    v_mul_u32_u24 v13, {RS}, v13
    v_mov_b32 v5, s8
    v_mov_b32 v6, s7
    v_cmp_gt_u32 vcc, 32, v1
    s_nop 1
    v_cndmask_b32 v5, v6, v5, vcc
    v_add_u32 v13, v13, v5
    buffer_load_dword v8, v13, s[{SRD_WS}:{SRD_WS+3}], s6 offen nt
    """)


def m_shuffle_store(a):
    a.c("weights in tile order")
    a(f"""
    s_lshr_b32 s8, s{sCSB}, 2
    s_cmp_lt_u32 s8, 28
    s_cselect_b32 s6, 0, 28
    s_cselect_b32 s7, 0, {16 * 114688}
    s_sub_u32 s8, s8, s6
    s_lshl_b32 s8, s8, 6
    v_and_b32 v5, 7, v1
    v_lshlrev_b32 v5, 3, v5
    v_add_u32 v5, s8, v5
    v_mul_u32_u24 v6, 586, v5
    v_lshrrev_b32 v6, 16, v6             ; f block
    v_mul_u32_u24 v2, {114688 - 224}, v6
    v_lshl_add_u32 v5, v5, 1, v2
    v_lshrrev_b32 v6, 3, v1
    v_mul_u32_u24 v6, 224, v6
    v_add_u32 v5, v5, v6
    s_and_b32 s6, s{sCSB}, 3
    s_lshl_b32 s6, s6, 2
    s_add_u32 s6, s6, s4
    s_mul_i32 s6, s6, 7168
    s_add_u32 s6, s6, s7
    s_add_u32 s6, s6, {WS_WSH}
    s_cmp_lt_u32 s{sCSB}, 224
    s_cselect_b32 s6, s6, {WS_SIZE}
    s_add_u32 s7, s6, 3584
    buffer_store_dwordx4 v[48:51], v5, s[{SRD_WS}:{SRD_WS+3}], s6 offen sc1
    buffer_store_dwordx4 v[52:55], v5, s[{SRD_WS}:{SRD_WS+3}], s6 offen offset:1792 sc1
    buffer_store_dwordx4 v[56:59], v5, s[{SRD_WS}:{SRD_WS+3}], s7 offen sc1
    buffer_store_dwordx4 v[60:63], v5, s[{SRD_WS}:{SRD_WS+3}], s7 offen offset:1792 sc1
    s_nop 1
    """)
```

```python
from common import *
import os
LPOL = os.environ.get('LPOL', 'sc1')

F_EPOCH = WS_FLAG
F2, F3, F1B = WS_FLAG + 0x2000, WS_FLAG + 0x3000, WS_FLAG + 0x4000
F1 = WS_FLAG - 0x8000 + 0x10000
F1X = 0xE00000
F1G = 0xE08000
F3L = 0xDF0000
sTAGL = 14
LOCAL_TRIES = 16
sTAG = 74
SPIN_LIMIT = 1 << 18


def tag_load(a):
    a(f"s_add_u32 s6, s{sWS}, {F_EPOCH}")
    a(f"s_addc_u32 s7, s{sWS+1}, 0")
    a(f"s_load_dword s{sTAG}, s[6:7], 0")


def tag_make(a):
    a(f"s_mul_i32 s{sTAG}, s{sTAG}, 0x9E3779B1")
    a(f"s_add_u32 s{sTAG}, s{sTAG}, 0x7F4A7C15")
    a(f"s_not_b32 s{sTAG+1}, s{sTAG}")
    a(f"s_getreg_b32 s{sTAGL+1}, hwreg(HW_REG_XCC_ID, 0, 4)")
    a(f"s_mov_b32 s{sTAGL}, s{sTAG}")
    a(f"s_add_u32 s{sTAGL+1}, s{sTAGL+1}, 1")
    import os
    if os.environ.get("FORCEG"):
        a("s_and_b32 s6, s2, 24")
        a(f"s_lshl_b32 s6, s6, 4")
        a(f"s_add_u32 s{sTAGL+1}, s{sTAGL+1}, s6")
    a(f"s_sub_u32 s{sTAGL+1}, s{sTAG+1}, s{sTAGL+1}")


def post(a, base, idx_sgpr, vt, shift=4, local=False, tag=None):
    pol, tag = ("", sTAGL) if local else (" sc1", sTAG)
    a(f"""
    v_mov_b32 v{vt}, s{tag}
    v_mov_b32 v{vt+1}, s{tag+1}
    v_mov_b32 v{vt+2}, 0
    s_lshl_b32 s6, s{idx_sgpr}, {shift}
    s_add_u32 s6, s6, {base}
    s_mov_b64 exec, 1
    buffer_store_dwordx2 v[{vt}:{vt+1}], v{vt+2}, s[{SRD_WS}:{SRD_WS+3}], s6 offen{pol}
    s_mov_b64 exec, -1
    """)


def post_epoch(a, vt):
    a(f"""
    v_mov_b32 v{vt}, s{sTAG}
    v_mov_b32 v{vt+1}, {F_EPOCH}
    s_mov_b64 exec, 1
    buffer_store_dword v{vt}, v{vt+1}, s[{SRD_WS}:{SRD_WS+3}], 0 offen sc1
    s_mov_b64 exec, -1
    """)


def poll(a, base, n, vlane, vt, first_sgpr=None, shift=4, local=False, tag=None):
    lab = a.label("poll")
    k = max(1, n // 64)
    if n < 64:
        a(f"v_and_b32 v{vt+8}, {n-1}, v{vlane}")
        a(f"v_lshlrev_b32 v{vt+8}, {shift}, v{vt+8}")
    else:
        a(f"v_lshlrev_b32 v{vt+8}, 4, v{vlane}")
    if first_sgpr is None:
        a(f"s_mov_b32 s6, {base}")
    else:
        a(f"s_lshl_b32 s6, s{first_sgpr}, {shift}")
        a(f"s_add_u32 s6, s6, {base}")
    a(f"s_mov_b32 s7, {SPIN_LIMIT}")
    a(f"{lab}:")
    for j in range(k):
        a(f"buffer_load_dwordx2 v[{vt+2*j}:{vt+2*j+1}], v{vt+8}, s[{SRD_WS}:{SRD_WS+3}], s6 offen offset:{1024*j} {LPOL if local else 'sc1'}")
    a("s_waitcnt vmcnt(0)")
    tag = tag or (sTAGL if local else sTAG)
    a(f"v_cmp_eq_u64 vcc, s[{tag}:{tag+1}], v[{vt}:{vt+1}]")
    for j in range(1, k):
        a(f"v_cmp_eq_u64 s[8:9], s[{sTAG}:{sTAG+1}], v[{vt+2*j}:{vt+2*j+1}]")
        a("s_nop 1")
        a("s_and_b64 vcc, vcc, s[8:9]")
    a(f"""
    s_nop 1
    s_cmp_eq_u64 vcc, exec
    s_cbranch_scc1 {lab}_ok
    s_sub_u32 s7, s7, 1
    s_cmp_eq_u32 s7, 0
    s_cbranch_scc1 {lab}_ok
    s_sleep 1
    s_branch {lab}
    {lab}_ok:
    """)


def arrive_post(a, lds_word, n, base, idx_sgpr, vt, local=False, shift=None):
    lab = a.label("arr")
    a(f"""
    v_mov_b32 v{vt}, {lds_word}
    v_mov_b32 v{vt+1}, 1
    s_mov_b64 exec, 1
    ds_add_rtn_u32 v{vt+2}, v{vt}, v{vt+1}
    s_mov_b64 exec, -1
    s_waitcnt lgkmcnt(0)
    v_readfirstlane_b32 s6, v{vt+2}
    s_nop 1
    s_cmp_lg_u32 s6, {n - 1}
    s_cbranch_scc1 {lab}
    """)
    post(a, base, idx_sgpr, vt, shift=shift or (7 if local else 4), local=local)
    a(f"{lab}:")


def arrive(a, lds_word, vt):
    a(f"""
    v_mov_b32 v{vt}, {lds_word}
    v_mov_b32 v{vt+1}, 1
    s_mov_b64 exec, 1
    ds_add_u32 v{vt}, v{vt+1}
    s_mov_b64 exec, -1
    """)


def await_count(a, lds_word, n, vt, sleep=0):
    lab = a.label("aw")
    a(f"""
    v_mov_b32 v{vt}, {lds_word}
    {lab}:
    ds_read_b32 v{vt+1}, v{vt}
    s_waitcnt lgkmcnt(0)
    v_readfirstlane_b32 s6, v{vt+1}
    s_nop 1
    s_cmp_ge_u32 s6, {n}
    s_cbranch_scc1 {lab}_ok
    """)
    if sleep:
        a(f"s_sleep {sleep}")
    a(f"s_branch {lab}")
    a(f"{lab}_ok:")


def by_locality(a, body):
    lab = a.label("loc")
    a(f"s_cmp_eq_u32 s{sLOC}, 1")
    a(f"s_cbranch_scc1 {lab}_l")
    body(" sc1")
    a(f"s_branch {lab}")
    a(f"{lab}_l:")
    body("")
    a(f"{lab}:")


def poll_local_or_global(a, vlane, vt, republish):
    lab = a.label("plg")
    a(f"""
    v_and_b32 v{vt+2}, 31, v{vlane}
    v_lshlrev_b32 v{vt+2}, 7, v{vt+2}
    v_lshrrev_b32 v{vt+3}, 5, v{vlane}
    v_mul_u32_u24 v{vt+3}, {F1G - F1}, v{vt+3}
    v_add_u32 v{vt+3}, v{vt+2}, v{vt+3}
    s_and_b32 s10, s{sPI}, 0xe0
    s_lshl_b32 s10, s10, 7
    s_add_u32 s10, s10, {F1}
    s_mov_b32 s11, 0
    {lab}:
    buffer_load_dwordx2 v[{vt}:{vt+1}], v{vt+3}, s[{SRD_WS}:{SRD_WS+3}], s10 offen {LPOL}
    s_waitcnt vmcnt(0)
    v_cmp_eq_u64 vcc, s[{sTAGL}:{sTAGL+1}], v[{vt}:{vt+1}]
    v_cmp_eq_u64 s[8:9], s[{sTAG}:{sTAG+1}], v[{vt}:{vt+1}]
    s_mov_b32 s{sLOC}, 1
    s_nop 0
    s_cmp_eq_u32 vcc_lo, -1
    s_cbranch_scc1 {lab}_ok
    s_mov_b32 s{sLOC}, 0
    s_cmp_eq_u32 s9, -1
    s_cbranch_scc1 {lab}_ok
    s_add_u32 s11, s11, 1
    s_cmp_eq_u32 s11, {SPIN_LIMIT}
    s_cbranch_scc1 {lab}_ok
    s_cmp_lg_u32 s11, {LOCAL_TRIES}
    s_cbranch_scc1 {lab}
    """)
    republish()
    a("s_waitcnt vmcnt(0)")
    post(a, F1G, sPI, vt, shift=7)
    a(f"s_branch {lab}")
    a(f"{lab}_ok:")


def read_locality(a, lds_word, vt):
    a(f"""
    v_mov_b32 v{vt}, {lds_word}
    ds_read_b32 v{vt}, v{vt}
    s_waitcnt lgkmcnt(0)
    v_readfirstlane_b32 s{sLOC}, v{vt}
    s_nop 1
    """)


def poll_x_and_stats(a, vlane, vt):
    lab = a.label("pxs")
    a(f"""
    v_lshlrev_b32 v{vt+10}, 4, v{vlane}
    v_and_b32 v{vt+11}, 31, v{vlane}
    v_lshlrev_b32 v{vt+11}, 7, v{vt+11}
    s_and_b32 s10, s{sPI}, 0xe0
    s_lshl_b32 s10, s10, 7
    s_add_u32 s10, s10, {F1X}
    s_mov_b32 s6, {F1B}
    s_mov_b32 s7, {SPIN_LIMIT}
    {lab}:
    buffer_load_dwordx2 v[{vt+8}:{vt+9}], v{vt+11}, s[{SRD_WS}:{SRD_WS+3}], s10 offen sc1
    """)
    for j in range(4):
        a(f"buffer_load_dwordx2 v[{vt+2*j}:{vt+2*j+1}], v{vt+10}, s[{SRD_WS}:{SRD_WS+3}], s6 offen offset:{1024*j} sc1")
    a("s_waitcnt vmcnt(0)")
    a(f"v_cmp_eq_u64 vcc, s[{sTAGL}:{sTAGL+1}], v[{vt+8}:{vt+9}]")
    a(f"s_cmp_eq_u32 s{sLOC}, 1")
    a("s_nop 0")
    a("s_cselect_b64 vcc, vcc, exec")
    for j in range(4):
        a(f"v_cmp_eq_u64 s[8:9], s[{sTAG}:{sTAG+1}], v[{vt+2*j}:{vt+2*j+1}]")
        a("s_nop 1")
        a("s_and_b64 vcc, vcc, s[8:9]")
    a(f"""
    s_cmp_eq_u64 vcc, exec
    s_cbranch_scc1 {lab}_ok
    s_sub_u32 s7, s7, 1
    s_cmp_eq_u32 s7, 0
    s_cbranch_scc1 {lab}_ok
    s_sleep 2
    s_branch {lab}
    {lab}_ok:
    """)
```

```python
import sys
import os
from common import *
from p0 import *
from conv import *
from sync import *

def only_wave(a, w, body):
    lab = a.label("ow")
    a(f"s_cmp_lg_u32 s{sWAVE}, {w}")
    a(f"s_cbranch_scc1 {lab}")
    body()
    a(f"{lab}:")


def build(stop=99):
    a = Asm()
    name = KNAME + "_kernel"
    if Stamps.on and os.environ.get("STAMPSET"):
        a("s_memrealtime s[98:99]")
    a(f"""
    L_begin:
    s_cmp_ge_u32 s2, 256
    s_cbranch_scc1 L_end
    s_load_dwordx16 s[16:31], s[0:1], 0
    s_load_dwordx8 s[32:39], s[0:1], 64
    s_load_dwordx2 s[40:41], s[0:1], 96
    v_lshrrev_b32 v1, 6, v0
    s_mov_b32 s{sMASK}, 0xffff0000
    v_readfirstlane_b32 s{sWAVE}, v1
    s_mov_b32 s{sSELLO}, 0x05040100
    s_mov_b32 s{sSELHI}, 0x07060302
    s_and_b32 s6, s2, 7
    s_lshl_b32 s6, s6, 5
    s_lshr_b32 s7, s2, 3
    s_add_u32 s{sPI}, s6, s7
    s_waitcnt lgkmcnt(0)
    """)
    wsoff = int(os.environ.get("WSOFF", "0"), 0)
    if wsoff:
        a(f"s_add_u32 s{sWS}, s{sWS}, {wsoff}")
        a(f"s_addc_u32 s{sWS+1}, s{sWS+1}, 0")
    a.srd(SRD_WS, sWS, WS_SIZE)
    tag_load(a)
    a(f"s_cmp_ge_u32 s{sWAVE}, 4")
    a("s_cbranch_scc1 L_roleM")

    a.c("================ L waves")
    Stamps.put(a, "L", "start")
    if Stamps.on and os.environ.get("STAMPSET"):
        Stamps.names["L"].append("g:entry")
        a("s_mov_b32 s89, s98")
    l_tile_issue(a)
    l_tile_setup(a)
    Stamps.put(a, "L", "issued")
    a("s_barrier")
    a("s_waitcnt lgkmcnt(0)")
    tag_make(a)
    l_tile_compute(a)
    Stamps.put(a, "L", "tile_done")
    arrive(a, L_CNT + 20, 66)
    await_count(a, L_CNT + 20, 4, 66)
    Stamps.put(a, "L", "B1")
    l_kv_store(a)
    Stamps.put(a, "L", "tile_stored")
    arrive(a, L_CNT + 32, 66)
    await_count(a, L_CNT + 32, 4, 66)
    a("v_and_b32 v1, 63, v0")
    import gemm1
    import gemm2
    lab = a.label("s1")
    a(f"s_cmp_lg_u32 s{sWAVE}, 0")
    a(f"s_cbranch_scc1 {lab}_x")
    a.c("---- L wave 0: hand-offs")
    post(a, F1, sPI, 8, shift=7, local=True)
    poll_local_or_global(a, 1, 8, lambda: l0_republish(a))
    Stamps.put(a, "L", "sync1")
    kvr_dma(a)
    a("s_waitcnt vmcnt(0)")
    arrive(a, L_CNT + 16, 8)
    Stamps.put(a, "L", "kv_landed")
    if os.environ.get("B1B"):
        a(f"s_sleep {os.environ['B1B']}")
    poll_x_and_stats(a, 1, 8)
    await_count(a, L_CNT, 7, 8)
    Stamps.put(a, "L", "sync1b")
    xrow_dma(a)
    stats_dma(a)
    a("s_waitcnt vmcnt(0)")
    arrive(a, L_CNT + 4, 8)
    Stamps.put(a, "L", "st1")
    gemm1.l_setup(a)
    gemm2.l_setup(a)
    await_count(a, L_CNT + 28, 3, 8, sleep=2)
    Stamps.put(a, "L", "W_landed")
    await_count(a, L_CNT + 12, 5, 8, sleep=2)
    a(f"s_sleep {int(os.environ.get('BACKOFF', 32))}")
    poll(a, F2, 256, 1, 8)
    a("s_cmp_lg_u32 s2, 0")
    a(f"s_cbranch_scc1 {lab}")
    post_epoch(a, 8)
    a(f"s_branch {lab}")
    a(f"{lab}_x:")
    a.c("---- L waves 1..3: x tile, column sums, weight prefill")
    l_x_store(a)
    gemm1.l_setup(a)
    gemm2.l_setup(a)
    a("s_waitcnt vmcnt(0)")
    arrive_post(a, L_CNT, 7, F1X, sPI, 8, local=True)

    def csf():
        await_count(a, L_CNT + 8, 4, 8)
        l_cs_final(a)
        a("s_waitcnt vmcnt(0)")
        arrive_post(a, L_CNT + 12, 5, F2, 2, 8)
    if os.environ.get("LATEW") == "kv":
        await_count(a, L_CNT + 16, 1, 8, sleep=2)
    if os.environ.get("LATEW") == "st":
        await_count(a, L_CNT + 4, 1, 8, sleep=2)
    gemm1.l_prefill_w(a, only_wave)
    only_wave(a, 1, csf)
    a("s_waitcnt vmcnt(0)")
    arrive(a, L_CNT + 28, 8)
    a(f"{lab}:")
    if stop >= 2:
        Stamps.put(a, "L", "sync2")
        a("s_barrier")
        gemm1.l_main(a, only_wave)
    if stop >= 3:
        gemm2.l_main(a, only_wave)
    Stamps.flush(a, "L")
    a("s_branch L_end")

    a("L_roleM:")
    a.c("================ M waves")
    a(f"""
    s_sub_u32 s4, s{sWAVE}, 4
    v_and_b32 v1, 63, v0
    """)
    Stamps.put(a, "M", "start")
    a(f"""
    v_mov_b32 v13, {L_CNT}
    v_mov_b32 v14, 0
    v_mov_b32 v15, 0
    """)
    for o in range(0, 56, 8):
        a(f"ds_write_b64 v13, v[14:15] offset:{o}")
    if not os.environ.get("NOCODE"):
        only_wave(a, 7, lambda: touch_code(a))
    a("s_waitcnt lgkmcnt(0)")
    a("s_barrier")
    if os.environ.get("TP"):
        only_wave(a, 6, lambda: touch_pages(a, int(os.environ['TP'])))
    m_stats_issue(a)
    m_conv_issue(a)
    early = False
    td = 1 if os.environ.get("TD") else 0
    if td:
        m_touch_dest(a)
    cs_issue(a)
    tag_make(a)
    m_stats_finish(a, 9 + td)
    a(f"s_waitcnt vmcnt({5 + td})")
    m_conv_pad(a)
    a("s_waitcnt lgkmcnt(0)")
    Stamps.put(a, "M", "k_landed")
    arrive(a, L_CNT + 36, 16)
    a("s_waitcnt vmcnt(0)")
    arrive_post(a, L_CNT + 24, 4, F1B, 2, 16)
    await_count(a, L_CNT + 36, 4, 16)
    Stamps.put(a, "M", "B2")
    m_conv_frags(a)

    def x0():
        await_count(a, L_CNT + 32, 4, 16)
        m_x_store0(a)
    only_wave(a, 7, x0)
    a("s_waitcnt vmcnt(0) lgkmcnt(0)")
    arrive_post(a, L_CNT, 7, F1X, sPI, 16, local=True)
    cs_partial(a)
    a("s_waitcnt lgkmcnt(0)")
    arrive(a, L_CNT + 8, 16)
    if gemm1.SHUF:
        m_shuffle_store(a)
    Stamps.put(a, "M", "frags")
    await_count(a, L_CNT + 16, 1, 2)
    Stamps.put(a, "M", "B3")
    a(f"s_setprio {os.environ.get('PRIO', 1)}")
    m_conv_main(a)
    m_conv_exchange_write(a)
    arrive(a, L_CNT + 4, 2)
    Stamps.put(a, "M", "conv_mfma")
    await_count(a, L_CNT + 4, 5, 2)
    m_conv_epilogue(a)
    a("s_waitcnt vmcnt(0)")
    arrive_post(a, L_CNT + 12, 5, F2, 2, 2)
    if not early:
        m_touch_w2(a)
    Stamps.put(a, "M", "hT_stored")
    if stop >= 2:
        gemm1.m_setup(a)
        a("s_barrier")
        gemm1.m_main(a)
    if stop >= 3:
        gemm2.m_main(a, only_wave)
    Stamps.flush(a, "M")
    a("s_endpgm")
    for blk in gemm1.SLOW:
        a(blk)
    a("L_end:")
    a("s_endpgm")

    head = open("cdna_kernels/" + KNAME + ".s.ref").read().split("; Override launch")[0]
    txt = head + f"; @launch grid=(256,1,1) block=(512,1,1) lds={LDS_BYTES}\n"
    txt += f""".amdgcn_target "amdgcn-amd-amdhsa--gfx950"
.text
.globl {name}
.p2align 8
.type {name},@function
{name}:
""" + a.text() + f""".section .rodata,"a"
.p2align 6
.amdhsa_kernel {name}
  .amdhsa_next_free_vgpr 256
  .amdhsa_next_free_sgpr 102
  .amdhsa_accum_offset 256
  .amdhsa_group_segment_fixed_size 0
  .amdhsa_kernarg_size 104
  .amdhsa_user_sgpr_count 2
  .amdhsa_user_sgpr_kernarg_segment_ptr 1
  .amdhsa_system_sgpr_workgroup_id_x 1
.end_amdhsa_kernel
"""
    return txt


if __name__ == "__main__":
    if "--cyc" in sys.argv:
        sys.argv.remove("--cyc")
        Stamps.cyc = True
    if "--stamp" in sys.argv:
        sys.argv.remove("--stamp")
        Stamps.on = True
    stop = int(sys.argv[1]) if len(sys.argv) > 1 else 99
    out = sys.argv[2] if len(sys.argv) > 2 else "cdna_kernels/" + KNAME + ".s"
    open(out, "w").write(build(stop))
    if Stamps.on:
        import json
        json.dump(dict(Stamps.names, cyc=Stamps.cyc), open(out + ".json", "w"))
```

```python
from common import *
from sync import *
import os
WNT = ' nt' if 'w' in os.environ.get('NT', '') else ''
KNT = '' if os.environ.get('KPLAIN') else ' nt'
HNT = '' if os.environ.get('KPLAIN') or os.environ.get('HPLAIN') else ' nt'
CNT = ' nt' if 'c' in os.environ.get('NT', '') else ''
W2NT = ' nt' if '2' in os.environ.get('NT', '') else ''

LW = 0
LH = 100352
LMISC = 157696
L_T1 = LH
L_T2 = LH + 8192
L_CNT = LMISC + 4032
L_CSP = LMISC + 2560
L_R = LH + 17408
L_ST = L_R + 9216
L_SH = L_ST
L_EX = LH
L_XR = L_ST + 16384
L_KC = L_ST + 16384

sMASK = 64
sSELLO, sSELHI = 65, 66


def l_tile_issue(a):
    a.c("P0 tile loads")
    a.srd(60, sSH, D * 8)
    a(f"""
    s_and_b32 s4, s2, 7                  ; g
    s_lshl_b32 s6, s4, 9
    v_and_b32 v7, 63, v0
    v_lshlrev_b32 v44, 3, v7
    buffer_load_dwordx2 v[46:47], v44, s[60:63], s6 offen nt
    """)
    a.srd(48, sK, S * D * 2)
    a(f"""
    s_lshr_b32 s5, s2, 3                 ; tt
    s_lshl_b32 s6, s5, 16                ; t0*1024
    s_lshl_b32 s7, s4, 7                 ; 128 g
    s_add_u32 s6, s6, s7
    v_and_b32 v1, 7, v0                  ; cg
    v_lshrrev_b32 v2, 3, v0              ; rp
    v_lshlrev_b32 v3, 11, v2
    v_lshl_add_u32 v3, v1, 4, v3
    v_add_u32 v3, s6, v3
    """)
    pass
    a(f"""
    buffer_load_dwordx4 v[20:23], v3, s[48:51], 0 offen{KNT}
    buffer_load_dwordx4 v[24:27], v3, s[48:51], 0 offen offset:1024{KNT}
    """)
    a.srd(52, sV, S * D * 2)
    a(f"""
    buffer_load_dwordx4 v[28:31], v3, s[52:55], 0 offen nt
    buffer_load_dwordx4 v[32:35], v3, s[52:55], 0 offen offset:1024 nt
    v_subrev_u32 v4, 3072, v3
    v_subrev_u32 v5, 2048, v3
    v_subrev_u32 v6, 1024, v3
    buffer_load_dwordx4 v[16:19], v6, s[48:51], 0 offen{HNT}
    buffer_load_dwordx4 v[12:15], v5, s[48:51], 0 offen{HNT}
    buffer_load_dwordx4 v[8:11], v4, s[48:51], 0 offen{HNT}
    """)


XLATE = bool(os.environ.get("XLATE"))


def l_x_issue(a):
    a("buffer_load_dwordx4 v[36:39], v3, s[56:59], 0 offen nt")
    a("buffer_load_dwordx4 v[40:43], v3, s[56:59], 0 offen offset:1024 nt")


def l_tile_setup(a):
    a.srd(56, sX, S * D * 2)
    if not XLATE:
        l_x_issue(a)
    a.c("LDS write bases and read-back / store offsets")
    a(f"""
    v_lshlrev_b32 v60, 2, v1             ; 4 cg
    v_sub_u32 v61, 31, v2
    v_xor_b32 v61, v61, v60
    v_xor_b32 v62, v2, v60
    v_lshlrev_b32 v63, 10, v1
    v_lshl_add_u32 v61, v61, 2, v63
    v_lshl_add_u32 v62, v62, 2, v63
    v_add_u32 v61, {L_T1}, v61
    v_add_u32 v62, {L_T2}, v62
    v_lshrrev_b32 v63, 6, v0
    v_xor_b32 v63, v63, v1               ; j ^ (d>>3)
    v_lshlrev_b32 v63, 4, v63
    v_lshl_add_u32 v63, v2, 7, v63       ; d*128 + 16*(j^(d>>3))
    v_add_u32 v63, {L_T1}, v63
    v_xor_b32 v64, 64, v63
    v_add_u32 v64, 4096, v64             ; rows d+32
    s_lshl_b32 s7, s4, 6
    v_add_u32 v65, s7, v2                ; channel 64g + d
    s_movk_i32 s8, {RS}
    v_mul_lo_u32 v65, v65, s8
    v_lshl_add_u32 v65, v1, 4, v65       ; + 16 j
    s_lshl_b32 s9, s5, 7                 ; t0*2
    s_sub_u32 s10, {WS_KVR + 3968}, s9
    s_add_u32 s11, s10, {32 * RS}
    s_add_u32 s12, s9, {WS_XT}
    s_add_u32 s13, s12, {32 * RS}
    """)


def l_tile_compute(a):
    a.c("P0 tile compute")
    a(f"""
    s_mul_i32 s6, s{sWAVE}, 1152
    s_add_u32 s6, s6, {L_SH}
    v_lshrrev_b32 v44, 3, v7
    v_mul_u32_u24 v44, 144, v44
    v_bfe_u32 v45, v7, 1, 2
    v_lshl_add_u32 v44, v45, 5, v44
    v_and_b32 v45, 1, v7
    v_lshl_add_u32 v44, v45, 2, v44
    v_add_u32 v44, s6, v44
    v_mul_u32_u24 v7, 144, v1
    v_add_u32 v7, s6, v7
    s_waitcnt vmcnt(9)
    v_lshlrev_b32 v48, 16, v46
    v_and_b32 v49, s{sMASK}, v46
    v_lshlrev_b32 v50, 16, v47
    v_and_b32 v51, s{sMASK}, v47
    ds_write2_b32 v44, v48, v49 offset0:0 offset1:2
    ds_write2_b32 v44, v50, v51 offset0:4 offset1:6
    """)
    for i in range(8):
        a(f"ds_read_b128 {vr(112 + 4*i, 4)}, v7 offset:{16*i}")
    a("s_waitcnt vmcnt(2) lgkmcnt(0)")
    Stamps.put(a, "L", "tile_landed")
    KU, VU, A_, B_, O = 76, 86, 90, 92, 94
    for q in range(4):
        W = 112 + 8 * q
        for j in range(5):
            a(f"v_lshlrev_b32 v{KU + 2 * j}, 16, v{8 + 4 * j + q}")
            a(f"v_and_b32 v{KU + 2 * j + 1}, s{sMASK}, v{8 + 4 * j + q}")
        for j in range(2):
            a(f"v_lshlrev_b32 v{VU + 2 * j}, 16, v{28 + 4 * j + q}")
            a(f"v_and_b32 v{VU + 2 * j + 1}, s{sMASK}, v{28 + 4 * j + q}")
        k = lambda j: vr(KU + 2 * j, 2)
        w = lambda j: vr(W + 2 * j, 2)
        a(f"v_pk_mul_f32 {vr(A_,2)}, {w(3)}, {k(0)}")
        a(f"v_pk_mul_f32 {vr(B_,2)}, {w(3)}, {k(1)}")
        for tap in (2, 1, 0):
            a(f"v_pk_fma_f32 {vr(A_,2)}, {w(tap)}, {k(3 - tap)}, {vr(A_,2)}")
            a(f"v_pk_fma_f32 {vr(B_,2)}, {w(tap)}, {k(4 - tap)}, {vr(B_,2)}")
        a(f"v_pk_mul_f32 {vr(A_,2)}, {vr(A_,2)}, {vr(VU,2)}")
        a(f"v_pk_mul_f32 {vr(B_,2)}, {vr(B_,2)}, {vr(VU+2,2)}")
        o = O + 2 * q
        a(f"v_cvt_pk_bf16_f32 v{o}, v{B_}, v{A_}")
        a(f"v_cvt_pk_bf16_f32 v{o+1}, v{B_+1}, v{A_+1}")
        a(f"ds_write2_b32 v61, v{o}, v{o+1} offset0:{64*q} offset1:{64*q+32}")
    a("s_waitcnt lgkmcnt(0)")


def l_kv_store(a):
    a.c("P0: kv read-back and stores, x tile -> LDS")
    a(f"""
    ds_read_b128 v[8:11], v63
    ds_read_b128 v[12:15], v64
    s_waitcnt lgkmcnt(1)
    buffer_store_dwordx4 v[8:11], v65, s[{SRD_WS}:{SRD_WS+3}], s10 offen
    s_waitcnt lgkmcnt(0)
    buffer_store_dwordx4 v[12:15], v65, s[{SRD_WS}:{SRD_WS+3}], s11 offen
    s_waitcnt vmcnt(2)
    """)
    for q in range(4):
        o = 102 + 2 * q
        a(f"v_perm_b32 v{o}, v{40+q}, v{36+q}, s{sSELLO}")
        a(f"v_perm_b32 v{o+1}, v{40+q}, v{36+q}, s{sSELHI}")
        a(f"ds_write2_b32 v62, v{o}, v{o+1} offset0:{64*q} offset1:{64*q+32}")
    a("s_waitcnt vmcnt(0) lgkmcnt(0)")


def l_x_store(a):
    a(f"""
    ds_read_b128 v[16:19], v63 offset:8192
    ds_read_b128 v[20:23], v64 offset:8192
    s_waitcnt lgkmcnt(1)
    buffer_store_dwordx4 v[16:19], v65, s[{SRD_WS}:{SRD_WS+3}], s12 offen
    s_waitcnt lgkmcnt(0)
    buffer_store_dwordx4 v[20:23], v65, s[{SRD_WS}:{SRD_WS+3}], s13 offen
    """)


def l0_republish(a):
    lab = a.label("rp")
    a(f"""
    s_lshr_b32 s6, s2, 3
    s_lshl_b32 s6, s6, 7                 ; t0 * 2
    s_sub_u32 s7, {WS_G + WS_KVR + 3968}, s6
    s_add_u32 s6, s6, {WS_G + WS_XT}
    v_mov_b32 v24, v63
    s_mov_b32 s8, 0
    {lab}:
    s_lshl_b32 s9, s8, 4
    v_xor_b32 v25, s9, v24
    ds_read_b128 v[16:19], v25
    ds_read_b128 v[20:23], v25 offset:8192
    s_waitcnt lgkmcnt(0)
    buffer_store_dwordx4 v[16:19], v65, s[{SRD_WS}:{SRD_WS+3}], s7 offen sc1
    buffer_store_dwordx4 v[20:23], v65, s[{SRD_WS}:{SRD_WS+3}], s6 offen sc1
    s_waitcnt vmcnt(0)
    v_add_u32 v24, 1024, v24
    s_add_u32 s6, s6, {8 * RS}
    s_add_u32 s7, s7, {8 * RS}
    s_add_u32 s8, s8, 1
    s_cmp_lt_u32 s8, 8
    s_cbranch_scc1 {lab}
    """)


def m_stats_issue(a):
    a.c("LN1 stats: two rows per wave, 32 lanes per row")
    a.srd(56, sX, S * D * 2)
    a(f"""
    s_lshl_b32 s5, s2, 3
    s_lshl_b32 s6, s4, 1
    s_add_u32 s5, s5, s6
    v_lshrrev_b32 v2, 5, v1
    v_add_u32 v2, s5, v2                 ; row
    v_and_b32 v3, 31, v1
    v_lshlrev_b32 v3, 5, v3
    v_lshl_add_u32 v3, v2, 10, v3
    buffer_load_dwordx4 v[16:19], v3, s[56:59], 0 offen nt
    buffer_load_dwordx4 v[20:23], v3, s[56:59], 0 offen offset:16 nt
    v_lshlrev_b32 v4, 3, v2
    v_add_u32 v4, {WS_ST1}, v4
    """)


def dpp_add(a, reg, ctrl):
    a(f"v_add_f32_dpp v{reg}, v{reg}, v{reg} {ctrl}")


def m_stats_finish(a, vm):
    a(f"s_waitcnt vmcnt({vm})")
    for i in range(8):
        a(f"v_lshlrev_b32 v{24+2*i}, 16, v{16+i}")
        a(f"v_and_b32 v{25+2*i}, s{sMASK}, v{16+i}")
    a("v_pk_mul_f32 v[42:43], v[24:25], v[24:25]")
    a("v_pk_add_f32 v[40:41], v[24:25], v[26:27]")
    a("v_pk_fma_f32 v[42:43], v[26:27], v[26:27], v[42:43]")
    for i in range(2, 8):
        a(f"v_pk_add_f32 v[40:41], v[40:41], {vr(24+2*i,2)}")
        a(f"v_pk_fma_f32 v[42:43], {vr(24+2*i,2)}, {vr(24+2*i,2)}, v[42:43]")
    a("v_add_f32 v40, v40, v41")
    a("v_add_f32 v41, v42, v43")
    for ctrl in ("quad_perm:[1,0,3,2] row_mask:0xf bank_mask:0xf", "quad_perm:[2,3,0,1] row_mask:0xf bank_mask:0xf",
                 "row_half_mirror row_mask:0xf bank_mask:0xf", "row_mirror row_mask:0xf bank_mask:0xf",
                 "row_bcast:15 row_mask:0xa bank_mask:0xf"):
        a("s_nop 1")
        dpp_add(a, 40, ctrl)
        dpp_add(a, 41, ctrl)
    a(f"""
    v_mul_f32 v40, 0x3b000000, v40       ; mean = S1/512
    v_mul_f32 v41, 0x3b000000, v41
    v_fma_f32 v41, -v40, v40, v41        ; var
    v_max_f32 v41, 0, v41
    v_add_f32 v41, 0x3727c5ac, v41       ; + 1e-5
    v_rsq_f32 v41, v41
    s_mov_b32 s6, 0x00010000
    s_mov_b32 s7, 0x00010000
    s_mov_b64 exec, s[6:7]
    buffer_store_dwordx2 v[40:41], v4, s[{SRD_WS}:{SRD_WS+3}], 0 offen sc1
    s_mov_b64 exec, -1
    """)


sCSB = 67


def cs_block(a):
    a(f"""
    s_bfe_u32 s6, s2, 0x20001            ; (wg & 7) >> 1
    s_mul_i32 s6, s6, 28
    s_lshr_b32 s7, s2, 3
    s_add_u32 s6, s6, s7
    s_cmp_ge_u32 s6, 56
    s_cselect_b32 s8, 56, 0
    s_add_u32 s6, s6, s8
    s_and_b32 s8, s2, 1
    s_mul_i32 s8, s8, 56
    s_add_u32 s6, s6, s8
    s_cmp_lt_u32 s7, 28
    s_cselect_b32 s{sCSB}, s6, 224
    """)


def cs_issue(a):
    a.c("column-sum loads")
    cs_block(a)
    a(f"""
    s_lshr_b32 s8, s{sCSB}, 2
    s_cmp_lt_u32 s8, 28
    s_cselect_b32 s60, s{sW1}, s{sW3}
    s_cselect_b32 s61, s{sW1+1}, s{sW3+1}
    s_cselect_b32 s6, 0, 28
    s_sub_u32 s6, s8, s6
    s_cmp_lt_u32 s{sCSB}, 224
    s_cselect_b32 s62, {D * F * 2}, 0
    s_mov_b32 s63, 0x00020000
    s_lshl_b32 s6, s6, 7
    s_and_b32 s7, s{sCSB}, 3
    s_lshl_b32 s7, s7, 2
    s_add_u32 s7, s7, s4
    s_mul_i32 s7, s7, {32 * F * 2}
    s_add_u32 s6, s6, s7
    v_lshrrev_b32 v5, 3, v1
    v_mul_u32_u24 v5, {F * 2}, v5
    v_and_b32 v6, 7, v1
    v_lshl_add_u32 v5, v6, 4, v5
    s_add_u32 s7, s6, {8 * F * 2}
    s_add_u32 s8, s6, {16 * F * 2}
    s_add_u32 s9, s6, {24 * F * 2}
    buffer_load_dwordx4 v[48:51], v5, s[60:63], s6 offen{CNT}
    buffer_load_dwordx4 v[52:55], v5, s[60:63], s7 offen{CNT}
    buffer_load_dwordx4 v[56:59], v5, s[60:63], s8 offen{CNT}
    buffer_load_dwordx4 v[60:63], v5, s[60:63], s9 offen{CNT}
    """)


def cs_partial(a):
    a.c("column-sum partials")
    for q in range(4):
        a(f"v_lshlrev_b32 v{64+2*q}, 16, v{48+q}")
        a(f"v_and_b32 v{65+2*q}, s{sMASK}, v{48+q}")
    for i in range(1, 4):
        for q in range(4):
            a(f"v_lshlrev_b32 v{72+2*q}, 16, v{48+4*i+q}")
            a(f"v_and_b32 v{73+2*q}, s{sMASK}, v{48+4*i+q}")
        for q in range(4):
            a(f"v_pk_add_f32 {vr(64+2*q,2)}, {vr(64+2*q,2)}, {vr(72+2*q,2)}")
    a("s_nop 1")
    for c in range(8):
        dpp_add(a, 64 + c, "row_ror:8 row_mask:0xf bank_mask:0xf")
    a("s_nop 1")
    for e in range(4):
        a(f"v_permlane32_swap_b32 v{64+e}, v{68+e}")
    a("s_nop 1")
    for e in range(4):
        a(f"v_add_f32 v{64+e}, v{64+e}, v{68+e}")
    a("s_nop 1")
    for e in range(2):
        a(f"v_permlane16_swap_b32 v{64+e}, v{66+e}")
    a(f"""
    v_lshrrev_b32 v5, 4, v1
    v_lshlrev_b32 v5, 3, v5
    v_and_b32 v6, 7, v1
    v_lshl_add_u32 v5, v6, 5, v5
    s_lshl_b32 s6, s4, 8
    s_add_u32 s6, s6, {L_CSP}
    v_add_u32 v5, s6, v5
    v_add_f32 v64, v64, v66
    v_add_f32 v65, v65, v67
    ds_write_b64 v5, v[64:65]
    """)


def l_cs_final(a):
    a.c("column sums: final reduction")
    cs_block(a)
    a(f"""
    v_lshlrev_b32 v9, 2, v1
    v_add_u32 v8, {L_CSP}, v9
    """)
    for i in range(4):
        a(f"ds_read_b32 v{48+i}, v8 offset:{256*i}")
    a(f"""
    s_and_b32 s6, s{sCSB}, 3
    s_mul_i32 s6, s6, {2 * F * 4}
    s_lshr_b32 s7, s{sCSB}, 2
    s_lshl_b32 s7, s7, 8
    s_add_u32 s6, s6, s7
    s_add_u32 s6, s6, {WS_CS}
    s_cmp_lt_u32 s{sCSB}, 224
    s_cselect_b32 s6, s6, {WS_SIZE}
    s_waitcnt lgkmcnt(0)
    """)
    for step in (2, 1):
        for i in range(step):
            a(f"v_add_f32 v{48+i}, v{48+i}, v{48+i+step}")
    a(f"buffer_store_dword v48, v9, s[{SRD_WS}:{SRD_WS+3}], s6 offen sc1")


def m_touch_w2(a):
    a.c("w2 -> last-level cache")
    a.srd(52, sW2, D * F * 2)
    a(f"""
    s_mul_i32 s6, s2, 7168
    s_mul_i32 s7, s4, 1792
    s_add_u32 s6, s6, s7
    v_min_u32 v13, 13, v1
    v_lshlrev_b32 v13, 7, v13
    buffer_load_dword v252, v13, s[52:55], s6 offen
    """)


def m_x_store0(a):
    a(f"""
    v_and_b32 v13, 7, v1
    v_lshrrev_b32 v14, 3, v1
    v_lshlrev_b32 v13, 4, v13
    v_lshl_add_u32 v15, v14, 7, v13
    v_add_u32 v15, {L_T2}, v15
    ds_read_b128 v[80:83], v15
    v_xor_b32 v15, 64, v15
    ds_read_b128 v[84:87], v15 offset:4096
    s_and_b32 s6, s2, 7
    s_lshl_b32 s6, s6, 6
    v_add_u32 v14, s6, v14
    v_mul_u32_u24 v14, {RS}, v14
    v_add_u32 v14, v14, v13
    s_lshr_b32 s6, s2, 3
    s_lshl_b32 s6, s6, 7
    s_add_u32 s6, s6, {WS_XT}
    s_add_u32 s7, s6, {32 * RS}
    """)
    a(f"""
    s_waitcnt lgkmcnt(0)
    buffer_store_dwordx4 v[80:83], v14, s[{SRD_WS}:{SRD_WS+3}], s6 offen
    buffer_store_dwordx4 v[84:87], v14, s[{SRD_WS}:{SRD_WS+3}], s7 offen
    """)


def touch_code(a):
    lab = a.label("tc")
    a.c("code -> L2")
    a(f"""
    s_lshr_b32 s6, s2, 3
    s_cmp_ge_u32 s6, (L_end-L_begin+8191)/8192
    s_cbranch_scc1 {lab}
    s_getpc_b64 s[52:53]
    {lab}_pc:
    s_sub_u32 s52, s52, {lab}_pc-L_begin
    s_subb_u32 s53, s53, 0
    s_mov_b32 s54, L_end-L_begin
    s_mov_b32 s55, 0x00020000
    s_lshl_b32 s6, s6, 13
    v_lshlrev_b32 v13, 7, v1
    buffer_load_dword v10, v13, s[52:55], s6 offen
    {lab}:
    """)


def touch_pages(a, who):
    lab = a.label("tp")
    a.c("page translations")
    a(f"""
    s_lshr_b32 s6, s2, 3
    s_cmp_ge_u32 s6, {who}
    s_cbranch_scc1 {lab}
    s_mov_b32 s8, s{sWS}
    s_mov_b32 s9, s{sWS+1}
    """)
    for i in range(8):
        a(f"s_load_dword s{88 + i}, s[8:9], 0xff000")
        a("s_add_u32 s8, s8, 0x200000")
        a("s_addc_u32 s9, s9, 0")
    a(f"s_load_dword s96, s[{sOUT}:{sOUT+1}], 0")
    a(f"s_load_dword s97, s[{sW2}:{sW2+1}], 0")
    a(f"s_load_dword s98, s[{sW1}:{sW1+1}], 0")
    a(f"s_load_dword s99, s[{sW3}:{sW3+1}], 0")
    a(f"{lab}:")


def m_touch_dest(a):
    a.c("destination lines -> L2")
    a(f"""
    s_and_b32 s6, s2, 7
    s_lshl_b32 s6, s6, 2
    s_add_u32 s6, s6, s4
    s_mul_i32 s6, s6, {16 * RS}
    s_lshr_b32 s7, s2, 3
    s_lshl_b32 s7, s7, 7
    s_sub_u32 s8, {WS_KVR + 3968}, s7
    s_add_u32 s7, s7, {WS_XT}
    v_and_b32 v13, 15, v1
    v_mul_u32_u24 v13, {RS}, v13
    v_mov_b32 v5, s8
    v_mov_b32 v6, s7
    v_cmp_gt_u32 vcc, 32, v1
    s_nop 1
    v_cndmask_b32 v5, v6, v5, vcc
    v_add_u32 v13, v13, v5
    buffer_load_dword v8, v13, s[{SRD_WS}:{SRD_WS+3}], s6 offen nt
    """)


def m_shuffle_store(a):
    a.c("weights in tile order")
    a(f"""
    s_lshr_b32 s8, s{sCSB}, 2
    s_cmp_lt_u32 s8, 28
    s_cselect_b32 s6, 0, 28
    s_cselect_b32 s7, 0, {16 * 114688}
    s_sub_u32 s8, s8, s6
    s_lshl_b32 s8, s8, 6
    v_and_b32 v5, 7, v1
    v_lshlrev_b32 v5, 3, v5
    v_add_u32 v5, s8, v5
    v_mul_u32_u24 v6, 586, v5
    v_lshrrev_b32 v6, 16, v6             ; f block
    v_mul_u32_u24 v2, {114688 - 224}, v6
    v_lshl_add_u32 v5, v5, 1, v2
    v_lshrrev_b32 v6, 3, v1
    v_mul_u32_u24 v6, 224, v6
    v_add_u32 v5, v5, v6
    s_and_b32 s6, s{sCSB}, 3
    s_lshl_b32 s6, s6, 2
    s_add_u32 s6, s6, s4
    s_mul_i32 s6, s6, 7168
    s_add_u32 s6, s6, s7
    s_add_u32 s6, s6, {WS_WSH}
    s_cmp_lt_u32 s{sCSB}, 224
    s_cselect_b32 s6, s6, {WS_SIZE}
    s_add_u32 s7, s6, 3584
    buffer_store_dwordx4 v[48:51], v5, s[{SRD_WS}:{SRD_WS+3}], s6 offen sc1
    buffer_store_dwordx4 v[52:55], v5, s[{SRD_WS}:{SRD_WS+3}], s6 offen offset:1792 sc1
    buffer_store_dwordx4 v[56:59], v5, s[{SRD_WS}:{SRD_WS+3}], s7 offen sc1
    buffer_store_dwordx4 v[60:63], v5, s[{SRD_WS}:{SRD_WS+3}], s7 offen offset:1792 sc1
    s_nop 1
    """)
```
